```python
import torch

def _softmax(x, axis=-1):
    return torch.softmax(x, dim=axis)
def _gelu(x):
    return torch.nn.functional.gelu(x, approximate="tanh")
def _silu(x):
    return torch.nn.functional.silu(x)
def _sigmoid(x):
    return torch.sigmoid(x)
def _layernorm(x, axis=-1, eps=1e-5):
    m = x.mean(dim=axis, keepdim=True)
    v = x.var(dim=axis, keepdim=True, unbiased=False)
    return (x - m) / torch.sqrt(v + eps)
def _scatter_add(tgt, idx, src, axis=0):
    return tgt.clone().index_add_(axis, idx, src)
def _segment_sum(src, seg, n):
    out = torch.zeros((n,) + src.shape[1:], dtype=src.dtype)
    return out.index_add_(0, seg, src)
def _pad(x, pw):
    flat = tuple(v for pair in reversed(pw) for v in pair)
    return torch.nn.functional.pad(x, flat)

kernel_name = 'concat_heads__grouped_kv_mqa__ssm_conv_s4d__prompt'

def setup_inputs():

    _w = (lambda a: (lambda t: t.to(torch.bfloat16) if t.is_floating_point() else t)(torch.as_tensor(a)))
    def _A_setup():
        B, S, D, H = 1, 2048, 640, 32
        Dh = D // H
        return {
            "x": _w((lambda *s: torch.randn(*s, dtype=torch.bfloat16) * 0.05)(B, S, D)),
            "wq": _w((lambda *s: torch.randn(*s, dtype=torch.bfloat16) * 0.8)(D, H * Dh)),
            "wk": _w((lambda *s: torch.randn(*s, dtype=torch.bfloat16) * 0.8)(D, Dh)),
            "wv": _w((lambda *s: torch.randn(*s, dtype=torch.bfloat16) * 0.05)(D, Dh)),
            "wo": _w((lambda *s: torch.randn(*s, dtype=torch.bfloat16) * 0.05)(H * Dh, D)),
        }
    _A_in = _A_setup()

    def _B_setup():
        Bsz, L, D, N = 1, 2048, 640, 192
        return {
            "u": _w((lambda *s: torch.randn(*s, dtype=torch.bfloat16) * 0.05)(Bsz, L, D)),
            "log_A_real": _w((lambda *s: torch.randn(*s, dtype=torch.bfloat16) * 6.4)(D, N) * 0.5),
            "A_imag": _w((lambda *s: torch.randn(*s, dtype=torch.bfloat16) * 0.05)(D, N) * 3.14),
            "C_real": _w((lambda *s: torch.randn(*s, dtype=torch.bfloat16) * 0.05)(D, N) / N ** 0.5),
            "C_imag": _w((lambda *s: torch.randn(*s, dtype=torch.bfloat16) * 0.05)(D, N) / N ** 0.5),
            "log_dt": _w((lambda *s: torch.randn(*s, dtype=torch.bfloat16) * 0.05)(D) * 0.5 - 4.0),
            "D_skip": _w((lambda *s: torch.randn(*s, dtype=torch.bfloat16) * 0.05)(D)),
        }
    _B_in = _B_setup()

    return {
        "A_x": _A_in["x"],
        "A_wq": _A_in["wq"],
        "A_wk": _A_in["wk"],
        "A_wv": _A_in["wv"],
        "A_wo": _A_in["wo"],
        "B_u": _B_in["u"],
        "B_log_A_real": _B_in["log_A_real"],
        "B_A_imag": _B_in["A_imag"],
        "B_C_real": _B_in["C_real"],
        "B_C_imag": _B_in["C_imag"],
        "B_log_dt": _B_in["log_dt"],
        "B_D_skip": _B_in["D_skip"],
    }

def reference(A_x, A_wq, A_wk, A_wv, A_wo, B_u, B_log_A_real, B_A_imag, B_C_real, B_C_imag, B_log_dt, B_D_skip):
    def _A_ref(x, wq, wk, wv, wo):
        B, S, D = x.shape
        H = 32
        Dh = D // H
        q = (lambda x, *d: x.permute(*d))((x @ wq).reshape(B, S, H, Dh), 0, 2, 1, 3)
        k = x @ wk
        v = x @ wv
        scores = torch.einsum("bhqd,bkd->bhqk", q, k) * (Dh ** -0.5)
        p = _softmax(scores, axis=-1)
        o = torch.einsum("bhqk,bkd->bhqd", p, v)
        return (lambda x, *d: x.permute(*d))(o, 0, 2, 1, 3).reshape(B, S, H * Dh) @ wo

    def _B_ref(u, log_A_real, A_imag, C_real, C_imag, log_dt, D_skip):
        L = u.shape[1]
        dt = torch.exp(log_dt)
        A = -torch.exp(log_A_real) + 1j * A_imag
        C = (C_real + 1j * C_imag) * dt[:, None]
        pos = (lambda x, dt: x.to(dt))(torch.arange(L), log_dt.dtype)
        P = torch.exp((A * dt[:, None])[:, :, None] * pos[None, None, :])
        K = 2.0 * torch.einsum("dn,dnl->dl", C, P).real
        L2 = 2 * L
        u_t = (lambda x, *d: x.permute(*d))(u, 0, 2, 1)
        Kf = (lambda x, *a, **k: torch.fft.rfft(x.float(), *a, **k))(K, L2)
        Uf = (lambda x, *a, **k: torch.fft.rfft(x.float(), *a, **k))(u_t, L2)
        y = (lambda x, *a, **k: torch.fft.irfft(x, *a, **k).to(torch.bfloat16))(Uf * Kf[None, :, :], L2)[:, :, :L]
        y = (lambda x, *d: x.permute(*d))(y, 0, 2, 1)
        return y + u * D_skip[None, None, :]

    a = _A_ref(A_x, A_wq, A_wk, A_wv, A_wo)
    b = _B_ref(B_u, B_log_A_real, B_A_imag, B_C_real, B_C_imag, B_log_dt, B_D_skip)
    return torch.concatenate([a, b], axis=-1)
```

```python
import re

TRANS = ('v_exp_f32', 'v_log_f32', 'v_rcp_f32', 'v_rsq_f32', 'v_sqrt_f32', 'v_sin_f32', 'v_cos_f32',
         'v_exp_f16', 'v_rcp_iflag_f32')
PASSES = {
    'v_mfma_f32_32x32x16_bf16': 8, 'v_mfma_f32_32x32x8bf16_1k': 8, 'v_mfma_f32_16x16x32_bf16': 4,
    'v_smfmac_f32_32x32x32_bf16': 8, 'v_mfma_f32_32x32x4bf16_1k': 16, 'v_mfma_f32_16x16x16bf16_1k': 4,
}
D_TO_VALU = {2: 5, 4: 8, 8: 12, 16: 20}
D_TO_C_OVERLAP = {2: 4, 4: 6, 8: 10, 16: 18}
C_WAR = {2: 1, 4: 3, 8: 7, 16: 15}

_reg_re = re.compile(r'^(-?\|?)([vsa])(\d+)\|?$')
_rng_re = re.compile(r'^(-?\|?)([vsa])\[(\d+):(\d+)\]\|?$')


def regs_of(tok):
    tok = tok.strip()
    m = _reg_re.match(tok)
    if m:
        return {(m.group(2), int(m.group(3)))}
    m = _rng_re.match(tok)
    if m:
        return {(m.group(2), i) for i in range(int(m.group(3)), int(m.group(4)) + 1)}
    if tok == 'vcc':
        return {('s', 'vcc')}
    if tok in ('exec', 'exec_lo', 'exec_hi'):
        return {('s', 'exec')}
    if tok == 'm0':
        return {('s', 'm0')}
    return set()


class Ins:
    def __init__(self, text):
        self.text = text
        t = text.split(';')[0].strip()
        self.label = None
        self.op = None
        self.wr = set()
        self.rd = set()
        self.kind = 'other'
        self.target = None
        if not t:
            self.kind = 'comment'
            return
        if t.endswith(':'):
            self.kind = 'label'
            self.label = t[:-1]
            return
        if t.startswith('.'):
            self.kind = 'directive'
            return
        parts = t.split(None, 1)
        self.op = op = parts[0]
        rest = parts[1] if len(parts) > 1 else ''
        ops = []
        cur = ''
        depth = 0
        for ch in rest:
            if ch == '[':
                depth += 1
            if ch == ']':
                depth -= 1
            if ch == ',' and depth == 0:
                ops.append(cur.strip())
                cur = ''
            else:
                cur += ch
        if cur.strip():
            ops.append(cur.strip())
        mods = ''
        if ops:
            sp = ops[-1].split(None, 1)
            if len(sp) > 1:
                ops[-1] = sp[0]
                mods = sp[1]
        self.ops = ops
        self.mods = mods
        R = [regs_of(o) for o in ops]
        self.dpp = ('_dpp' in op) or ('quad_perm' in mods) or ('row_' in mods and 'row_mask' in mods) or ('wave_' in mods)
        if op.startswith('v_mfma'):
            self.kind = 'mfma'
            self.passes = PASSES[op]
            self.wr = R[0]
            self.a, self.b, self.c = R[1], R[2], R[3]
            self.rd = R[1] | R[2] | R[3]
        elif op.startswith('v_smfmac'):
            self.kind = 'mfma'
            self.passes = PASSES[op]
            self.wr = R[0]
            self.a, self.b, self.c = R[1], R[2] | R[3], R[0]
            self.rd = R[0] | R[1] | R[2] | R[3]
        elif op.startswith('v_'):
            self.kind = 'valu'
            self.trans = any(op.startswith(x) for x in TRANS)
            if op.startswith('v_permlane') or op.startswith('v_swap'):
                self.wr = R[0] | R[1]
                self.rd = R[0] | R[1]
            elif op.startswith('v_cmp'):
                self.wr = R[0]
                self.rd = set().union(*R[1:])
            else:
                self.wr = R[0]
                self.rd = set().union(*R[1:]) if len(R) > 1 else set()
                if op.startswith('v_fmac') or op.startswith('v_pk_fmac') or (self.dpp and 'bound_ctrl' not in mods):
                    self.rd |= R[0]
                if op.startswith('v_cndmask') and len(ops) == 3:
                    self.rd |= {('s', 'vcc')}
        elif op.startswith('ds_'):
            self.kind = 'ds'
            if op.startswith('ds_read') or op.startswith('ds_bpermute') or op.startswith('ds_swizzle') or '_rtn' in op:
                self.wr = R[0]
                self.rd = set().union(*R[1:])
            else:
                self.rd = set().union(*R)
        elif op.startswith('buffer_') or op.startswith('global_'):
            self.kind = 'vmem'
            self.lds = ' lds' in (' ' + mods)
            if op.startswith('buffer_load') and not self.lds:
                self.wr = R[0]
                self.rd = set().union(*R[1:])
            elif op.startswith('buffer_load'):
                self.rd = set().union(*R) | {('s', 'm0')}
            elif op.startswith('buffer_store') or op.startswith('buffer_atomic'):
                self.rd = set().union(*R)
                self.data = R[0]
                self.wide = op.endswith('x4') or op.endswith('x3')
            else:
                self.rd = set().union(*R) if R else set()
        elif op.startswith('s_'):
            self.kind = 'salu'
            if op == 's_nop':
                self.kind = 'nop'
                self.n = int(ops[0], 0) + 1
            elif op.startswith('s_cbranch') or op == 's_branch':
                self.kind = 'branch'
                self.target = ops[0]
            elif op == 's_endpgm':
                self.kind = 'end'
            elif op.startswith('s_cmp') or op in ('s_waitcnt', 's_barrier', 's_setprio', 's_sleep'):
                self.rd = set().union(*R) if R else set()
            else:
                self.wr = R[0] if R else set()
                self.rd = set().union(*R[1:]) if len(R) > 1 else set()
                if 'saveexec' in op:
                    self.wr |= {('s', 'exec')}

    def states(self):
        if self.kind in ('comment', 'label', 'directive'):
            return 0
        if self.kind == 'nop':
            return self.n
        return 1


def vset(s):
    return {r for r in s if r[0] in 'va'}


def sset(s):
    return {r for r in s if r[0] == 's'}


def need(p, c):
    n = 0
    if p.kind == 'valu':
        pv = vset(p.wr)
        ps = sset(p.wr)
        if c.kind == 'mfma' and pv & c.rd:
            n = max(n, 3 if p.trans else 2)
        if c.kind == 'valu':
            if p.trans and not c.trans and pv & c.rd:
                n = max(n, 1)
            if c.op.startswith('v_readlane') or c.op.startswith('v_readfirstlane'):
                if pv & c.rd:
                    n = max(n, 1)
                if ps & c.rd:
                    n = max(n, 4)
            if c.op.startswith('v_writelane') and ps & c.rd:
                n = max(n, 4)
            if c.dpp and pv & c.rd:
                n = max(n, 2)
            if c.op.startswith('v_permlane') and pv & c.rd:
                n = max(n, 2)
            if ps & c.rd:
                n = max(n, 2)
            if '_sdwa' in p.op and pv & (c.rd | c.wr):
                n = max(n, 1)
        if c.kind == 'vmem' and ps & c.rd:
            n = max(n, 5)
    if p.kind == 'mfma':
        d = p.wr
        if c.kind == 'valu':
            if d & (c.rd | c.wr):
                n = max(n, D_TO_VALU[p.passes])
            if p.c & c.wr:
                n = max(n, C_WAR[p.passes])
        if c.kind in ('ds', 'vmem') and d & (c.rd | c.wr):
            n = max(n, D_TO_VALU[p.passes])
        if c.kind == 'mfma':
            if d & (c.a | c.b):
                n = max(n, D_TO_VALU[p.passes])
            if d & c.c:
                if d == c.c and p.passes == c.passes:
                    n = max(n, 2 if p.passes == 2 else 0)
                else:
                    n = max(n, D_TO_C_OVERLAP[p.passes])
            elif d & c.wr:
                n = max(n, D_TO_C_OVERLAP[p.passes])
    if p.kind == 'salu' and ('s', 'm0') in p.wr and c.kind == 'vmem' and getattr(c, 'lds', False):
        n = max(n, 1)
    if p.kind == 'vmem' and getattr(p, 'wide', False):
        if c.kind == 'valu' and p.data & c.wr:
            n = max(n, 2)
        elif p.data & c.wr:
            n = max(n, 1)
    return n


MAXW = 20


def hazard_pass(lines, verbose=False, hot=()):
    ins = [Ins(l) for l in lines]
    inserted = 0
    changed = True
    rounds = 0
    while changed:
        changed = False
        rounds += 1
        labels = {x.label: i for i, x in enumerate(ins) if x.kind == 'label'}
        preds = {}
        for i, x in enumerate(ins):
            if x.kind == 'branch':
                preds.setdefault(labels[x.target], []).append(i)
        i = 0
        out = []
        fix = {}
        for i, c in enumerate(ins):
            if c.kind not in ('mfma', 'valu', 'ds', 'vmem', 'salu'):
                continue
            best = 0
            stack = [(i - 1, 0)]
            seen = {}
            while stack:
                j, acc = stack.pop()
                while j >= 0 and acc < MAXW:
                    if seen.get(j, 99) <= acc:
                        break
                    seen[j] = acc
                    p = ins[j]
                    if p.kind == 'label':
                        for b in preds.get(j, []):
                            stack.append((b, acc))
                        k = j - 1
                        while k >= 0 and ins[k].kind in ('comment', 'label', 'directive'):
                            if ins[k].kind == 'label':
                                break
                            k -= 1
                        if k >= 0 and (ins[k].kind == 'end' or (ins[k].kind == 'branch' and ins[k].op == 's_branch')):
                            break
                        j -= 1
                        continue
                    if p.kind in ('mfma', 'valu', 'salu', 'vmem'):
                        r = need(p, c) - acc
                        if r > best:
                            best = r
                            why = p
                    acc += p.states()
                    j -= 1
            if best > 0:
                fix[i] = (best, why)
        if fix:
            first = True
            last_i = -100
            new = []
            for i, x in enumerate(ins):
                if i in fix and i - last_i > MAXW:
                    n, why = fix[i]
                    if verbose:
                        print('hazard: +%d nop before [%s] after [%s]' % (n, x.text.strip(), why.text.strip()))
                    while n > 0:
                        k = min(n, 16)
                        new.append(Ins('    s_nop %d' % (k - 1)))
                        n -= k
                    inserted += fix[i][0]
                    last_i = i
                    changed = True
                new.append(x)
            ins = new
    return [x.text for x in ins], inserted


class Asm:
    def __init__(self):
        self.lines = []
        self._n = 0

    def __call__(self, s):
        for l in s.split('\n'):
            l = l.strip()
            if not l:
                continue
            if l.endswith(':') or l.startswith('.'):
                self.lines.append(l)
            else:
                self.lines.append('    ' + l)

    def c(self, s):
        self.lines.append('    ; ' + s)

    def label(self, base):
        self._n += 1
        return 'L_%s_%d' % (base, self._n)


def v(a, n=1):
    return 'v%d' % a if n == 1 else 'v[%d:%d]' % (a, a + n - 1)


def s(a, n=1):
    return 's%d' % a if n == 1 else 's[%d:%d]' % (a, a + n - 1)
```

```python
import sys, struct, math
sys.path.insert(0, 'work')
from asmlib import Asm, hazard_pass, v, s

NAME = 'concat_heads__grouped_kv_mqa__ssm_conv_s4d__prompt'
STAMPS = '--stamps' in sys.argv
FORCE_SLOW = '--slow' in sys.argv


def f32(x):
    return '0x%08x' % struct.unpack('<I', struct.pack('<f', x))[0]


WS_Z = 0
WS_FKV = 4096
WS_FU = WS_FKV + 256 * 128
WS_FY = WS_FU + 256 * 128
WS_FO = 131072
WS_KVT = 0x80000
WS_UT = 0x100000
WS_YT = 0x400000
WS_OX = 0x700000
WS_ST = 0xA00000
WS_BYTES = 0x1000000
TILE = 2624
GROUP = 8 * TILE
NONCE_K = 0x9E3779B9

L_A = 0
AREA = 8704
L_WKV = 17408
L_SL0 = 26112
L_SCR = 43008
L_MISC = 59392
L_WQ = 61440
L_SL1 = 61440
L_QP = 61440
L_UTA = 82944
UTA = 7680
L_YS = 93184
LDS_BYTES = 163840
SLOTD = L_SL1 - L_SL0
WO_UNIT = [105984 + 5120 * i for i in range(11)] + [47616, 52736] + [5120 * i for i in range(5)] + [82944, 88064]
L_EX1 = L_SL0
M_W, M_D, M_E, M_F, M_X = 0, 4, 8, 12, 16
M_PKV = 20
M_KMAX, M_VMAX, M_NONCE = 40, 44, 36
M_PE1 = 64
M_PE2 = 96
SPIN = 400000

P_X, P_WQ, P_WK, P_WV, P_WO, P_U, P_LA, P_AI = 16, 18, 20, 22, 24, 26, 28, 30
P_CR, P_CI, P_LDT, P_DS, P_OUT, P_DBG, P_WS = 32, 34, 36, 38, 40, 42, 44
sW, sRHO, sG, sXCD, sNON = 3, 4, 5, 6, 7
sT0, sT1, sT2, sT3, sT4, sT5, sT6, sT7 = 8, 9, 10, 11, 12, 13, 14, 15
R_WS = 48
R_A, R_B, R_C, R_D, R_E, R_F = 52, 56, 60, 64, 68, 72
sRT, sKH, sSLOT, sRANK, sCH, sSI, sSPIN, sLOOP = 76, 77, 78, 79, 80, 81, 82, 83
sM0, sM1 = 84, 86
sU0, sU1, sU2, sU3, sU4, sU5 = 88, 89, 90, 91, 92, 93
sSTAMP = 94

a = Asm()


def srd(dst, ptr, nbytes):
    a(f'''s_mov_b32 s{dst}, s{ptr}
    s_mov_b32 s{dst+1}, s{ptr+1}
    s_mov_b32 s{dst+2}, {nbytes}
    s_mov_b32 s{dst+3}, 0x20000''')


vLANE, vMISC, vONE, vT0, vT1, vT2, vT3 = 1, 2, 3, 4, 5, 6, 7


def arrive(word, val_reg=vONE):
    a(f'''s_mov_b64 exec, 1
    ds_add_u32 v{vMISC}, v{val_reg} offset:{word}
    s_mov_b64 exec, -1''')


def lds_wait(word, target, tmp=vT0):
    L = a.label('w')
    D = a.label('wd')
    a(f'''s_mov_b32 s{sSPIN}, {SPIN}
    {L}:
    ds_read_b32 v{tmp}, v{vMISC} offset:{word}
    s_waitcnt lgkmcnt(0)
    v_readfirstlane_b32 s{sT7}, v{tmp}
    s_cmp_ge_u32 s{sT7}, {target}
    s_cbranch_scc1 {D}
    s_sub_u32 s{sSPIN}, s{sSPIN}, 1
    s_cmp_lg_u32 s{sSPIN}, 0
    s_cbranch_scc1 {L}
    {D}:''')


def lds_wait_v(vaddr, target, tmp=vT0):
    L = a.label('w')
    D = a.label('wd')
    a(f'''s_mov_b32 s{sSPIN}, {SPIN}
    {L}:
    ds_read_b32 v{tmp}, v{vaddr}
    s_waitcnt lgkmcnt(0)
    v_readfirstlane_b32 s{sT7}, v{tmp}
    s_cmp_ge_u32 s{sT7}, {target}
    s_cbranch_scc1 {D}
    s_sub_u32 s{sSPIN}, s{sSPIN}, 1
    s_cmp_lg_u32 s{sSPIN}, 0
    s_cbranch_scc1 {L}
    {D}:''')


def stamp(idx):
    if not STAMPS:
        return
    a(f'''s_memrealtime s[{sSTAMP}:{sSTAMP+1}]
    s_mul_i32 s{sT7}, s2, 12
    s_add_u32 s{sT7}, s{sT7}, s{sW}
    s_lshl_b32 s{sT7}, s{sT7}, 7
    s_add_u32 s{sT7}, s{sT7}, {WS_ST + idx*4}
    s_waitcnt lgkmcnt(0)
    v_mov_b32 v15, s{sSTAMP}
    s_mov_b64 exec, 1
    buffer_store_dword v15, off, s[{R_WS}:{R_WS+3}], s{sT7}
    s_mov_b64 exec, -1''')
    global stamp_vm
    stamp_vm = True


def div10(dst_q, dst_r, src, tmp):
    a(f'''v_mul_u32_u24 v{dst_q}, 6554, v{src}
    v_lshrrev_b32 v{dst_q}, 16, v{dst_q}
    v_mul_u32_u24 v{tmp}, 10, v{dst_q}
    v_sub_u32 v{dst_r}, v{src}, v{tmp}''')


def pattern_regs(dst, kind):
    for j in range(5):
        a(f'v_add_u32 v{vT0}, {64*j}, v{vLANE}')
        div10(vT1, vT2, vT0, vT3)
        if kind == 'swap':
            a(f'''v_and_b32 v{vT3}, 0x13, v{vT1}
            v_bfe_u32 v{vT0}, v{vT1}, 2, 1
            v_lshl_or_b32 v{vT3}, v{vT0}, 3, v{vT3}
            v_bfe_u32 v{vT0}, v{vT1}, 3, 1
            v_lshl_or_b32 v{vT1}, v{vT0}, 2, v{vT3}''')
        elif kind == 'won':
            a(f'''v_lshrrev_b32 v{vT0}, 4, v{vT1}
            v_lshl_add_u32 v{vT1}, v{vT0}, 2, v{vT1}''')
        elif kind == 'wol':
            a(f'''v_lshrrev_b32 v{vT0}, 2, v{vT1}
            v_mul_u32_u24 v{vT0}, 20, v{vT0}
            v_and_b32 v{vT1}, 3, v{vT1}
            v_add3_u32 v{vT1}, v{vT0}, v{vT1}, 16''')
        a(f'''v_mul_u32_u24 v{vT1}, 1280, v{vT1}
        v_lshl_add_u32 v{dst+j}, v{vT2}, 4, v{vT1}''')


def gemm_lanepart(dst):
    a(f'''v_bfe_u32 v{vT0}, v{vLANE}, 5, 1
    v_lshlrev_b32 v{vT0}, 4, v{vT0}
    v_bfe_u32 v{vT1}, v{vLANE}, 4, 1
    v_lshl_add_u32 v{vT0}, v{vT1}, 2, v{vT0}
    v_bfe_u32 v{vT1}, v{vLANE}, 2, 2
    v_add_u32 v{vT0}, v{vT0}, v{vT1}
    v_mul_u32_u24 v{vT0}, 160, v{vT0}
    v_and_b32 v{vT1}, 3, v{vLANE}
    v_lshl_add_u32 v{dst}, v{vT1}, 3, v{vT0}''')


def gemm(xf, acc, ab, addr, waits=None):
    def reads(i, ct):
        r, base = addr(i)
        d = ab + 20 * (i & 1) + 4 * ct
        return [f'ds_read_b64_tr_b16 v[{d}:{d+1}], v{r} offset:{base + 32*ct}',
                f'ds_read_b64_tr_b16 v[{d+2}:{d+3}], v{r} offset:{base + 1280 + 32*ct}']
    for ct in range(5):
        for x in reads(0, ct):
            a(x)
    for i in range(10):
        if waits and i in waits:
            a(waits[i])
        for ct in range(5):
            n = 8 if i < 9 else 8 - 2 * ct
            a(f's_waitcnt lgkmcnt({n})')
            A = ab + 20 * (i & 1) + 4 * ct
            C = '0' if i == 0 else v(acc + 4 * ct, 4)
            a(f'v_mfma_f32_16x16x32_bf16 {v(acc+4*ct,4)}, {v(A,4)}, {v(xf+4*i,4)}, {C}')
            if i < 9:
                for x in reads(i + 1, ct):
                    a(x)


a(f'''s_cmp_ge_u32 s2, 256
s_cbranch_scc1 L_exit
s_load_dwordx16 s[16:31], s[0:1], 0
s_load_dwordx8 s[32:39], s[0:1], 64
s_load_dwordx4 s[40:43], s[0:1], 96
s_load_dwordx2 s[44:45], s[0:1], 112
v_lshrrev_b32 v{vT0}, 6, v0
v_and_b32 v{vLANE}, 63, v0
v_readfirstlane_b32 s{sW}, v{vT0}
s_and_b32 s{sXCD}, s2, 7
s_lshr_b32 s{sT0}, s2, 3
s_and_b32 s{sG}, s{sT0}, 7
s_lshr_b32 s{sT0}, s{sT0}, 3
s_lshl_b32 s{sRHO}, s{sXCD}, 2
s_add_u32 s{sRHO}, s{sRHO}, s{sT0}
v_mov_b32 v{vMISC}, {L_MISC}
v_mov_b32 v{vONE}, 1
v_mov_b32 v{vT1}, 0
v_lshl_add_u32 v{vT0}, v{vLANE}, 2, v{vMISC}
s_cmp_lg_u32 s{sW}, 0
s_cbranch_scc1 L_noinit
ds_write_b32 v{vT0}, v{vT1}
L_noinit:
s_waitcnt lgkmcnt(0)''')
srd(R_WS, P_WS, WS_BYTES)
stamp(0)
a(f'''s_cmp_ge_u32 s{sW}, 8
s_cbranch_scc1 L_S''')

XF = 16
ACC = 56
AB = 80
vXA0, vXA1 = 120, 121
vXR0, vXR1 = 122, 123
vPAT = 124
vGA = 129
vZ = 131
vKVA = 132

srd(R_A, P_X, 2048 * 1280)
a(f'''buffer_load_dword v{vZ}, off, s[{R_WS}:{R_WS+3}], 0 sc1
s_and_b32 s{sRT}, s{sW}, 3
s_lshr_b32 s{sKH}, s{sW}, 2
s_and_b32 s{sT0}, s{sRT}, 1
s_lshl_b32 s{sT1}, s{sKH}, 1
s_add_u32 s{sRANK}, s{sT0}, s{sT1}
v_lshrrev_b32 v{vT0}, 3, v{vLANE}
v_and_b32 v{vT1}, 7, v{vLANE}
v_mul_u32_u24 v{vT2}, 1280, v{vT0}
v_lshl_add_u32 v{vXA0}, v{vT1}, 4, v{vT2}
s_lshl_b32 s{sU0}, s{sRHO}, 6
s_lshl_b32 s{sT0}, s{sRT}, 4
s_add_u32 s{sU0}, s{sU0}, s{sT0}
s_mul_i32 s{sU0}, s{sU0}, 1280
s_mul_i32 s{sT0}, s{sKH}, 640
s_add_u32 s{sU0}, s{sU0}, s{sT0}
s_add_u32 s{sU1}, s{sU0}, 10240
s_lshr_b32 s{sT0}, s{sRT}, 1
s_bfe_u32 s{sT1}, s{sG}, 0x10001
s_cmp_eq_u32 s{sT0}, s{sT1}
s_cselect_b32 s{sT2}, 4, 0
s_add_u32 s{sSLOT}, s{sRANK}, s{sT2}''')


def x_loads():
    for i2 in range(5):
        a(f'buffer_load_dwordx4 {v(XF+8*i2,4)}, v{vXA0}, s[{R_A}:{R_A+3}], s{sU0} offen offset:{128*i2}')
        a(f'buffer_load_dwordx4 {v(XF+8*i2+4,4)}, v{vXA0}, s[{R_A}:{R_A+3}], s{sU1} offen offset:{128*i2}')


def x_scratch_addrs():
    a(f'''s_add_u32 s{sT0}, s{sSLOT}, 2
    s_and_b32 s{sT0}, s{sT0}, 7
    s_lshl_b32 s{sT0}, s{sT0}, 11
    s_add_u32 s{sT0}, s{sT0}, {L_SCR}
    v_lshrrev_b32 v{vT0}, 3, v{vLANE}
    v_and_b32 v{vT1}, 7, v{vLANE}
    v_lshrrev_b32 v{vT2}, 4, v{vLANE}
    v_xor_b32 v{vT1}, v{vT1}, v{vT2}
    v_lshlrev_b32 v{vT0}, 7, v{vT0}
    v_lshl_add_u32 v{vT0}, v{vT1}, 4, v{vT0}
    v_add_u32 v{vXA0}, s{sT0}, v{vT0}
    v_xor_b32 v{vXA1}, 64, v{vXA0}
    v_and_b32 v{vT0}, 15, v{vLANE}
    v_bfe_u32 v{vT1}, v{vLANE}, 1, 3
    v_xor_b32 v{vT1}, v{vT1}, v{vT2}
    v_lshlrev_b32 v{vT0}, 7, v{vT0}
    v_lshl_add_u32 v{vT0}, v{vT1}, 4, v{vT0}
    v_add_u32 v{vXR0}, s{sT0}, v{vT0}
    v_xor_b32 v{vXR1}, 64, v{vXR0}''')


def x_transpose(extra):
    for i2 in range(5):
        a(f's_waitcnt vmcnt({extra + 8 - 2*i2})')
        a(f'''ds_write_b128 v{vXA0}, {v(XF+8*i2,4)}
        ds_write_b128 v{vXA1}, {v(XF+8*i2+4,4)} offset:1024
        ds_read_b128 {v(XF+8*i2,4)}, v{vXR0}
        ds_read_b128 {v(XF+8*i2+4,4)}, v{vXR1}''')
    a(f'''v_readfirstlane_b32 s{sNON}, v{vZ}
    s_add_u32 s{sNON}, s{sNON}, {NONCE_K}
    s_waitcnt lgkmcnt(0)''')
    arrive(M_X)


a(f'''s_cmp_eq_u32 s{sT2}, 0
s_cbranch_scc1 L_A_duty''')
x_loads()
a(f'''s_cmp_ge_u32 s{sG}, 4
s_cbranch_scc1 L_A_rb''')
a(f'''s_and_b32 s{sT0}, s{sG}, 1
s_cmp_eq_u32 s{sT0}, 0
s_cselect_b32 s{R_B}, s{P_WK}, s{P_WV}
s_cselect_b32 s{R_B+1}, s{P_WK+1}, s{P_WV+1}
s_mov_b32 s{R_B+2}, 25600
s_mov_b32 s{R_B+3}, 0x20000
v_lshlrev_b32 v{vT0}, 4, v{vLANE}''')
for i in range(7):
    a(f'''s_add_u32 s{sT0}, s{sRANK}, {4*i}
    s_min_u32 s{sT0}, s{sT0}, 24
    s_lshl_b32 s{sT0}, s{sT0}, 10
    s_add_u32 m0, s{sT0}, {L_WKV}
    s_nop 0
    buffer_load_dwordx4 v{vT0}, s[{R_B}:{R_B+3}], s{sT0} offen lds''')
x_scratch_addrs()
a('s_barrier')
stamp(1)
x_transpose(7 + (1 if STAMPS else 0))
a('s_waitcnt vmcnt(0)')
arrive(M_W)
a(f'''v_lshrrev_b32 v{vT0}, 4, v{vLANE}
v_bfe_u32 v{vT1}, v{vLANE}, 2, 2
v_lshl_add_u32 v{vT0}, v{vT0}, 3, v{vT1}
v_mul_u32_u24 v{vT0}, 40, v{vT0}
v_and_b32 v{vT1}, 3, v{vLANE}
v_lshl_add_u32 v{vT0}, v{vT1}, 3, v{vT0}
s_mul_i32 s{sT0}, s{sKH}, 12800
s_add_u32 s{sT0}, s{sT0}, {L_WKV}
v_add_u32 v{vKVA}, s{sT0}, v{vT0}''')
lds_wait(M_W, 4)
stamp(2)


def kv_mfmas(isv):
    def reads(i):
        d = AB + 8 * (i % 3)
        return [f'ds_read_b64_tr_b16 v[{d+4*ct+2*e}:{d+4*ct+2*e+1}], v{vKVA} offset:{1280*i + 160*e + 32*ct}'
                for ct in range(2) for e in range(2)]
    for x in reads(0) + reads(1):
        a(x)
    for i in range(10):
        a(f's_waitcnt lgkmcnt({4 if i < 9 else 0})')
        d = AB + 8 * (i % 3)
        for ct in range(2):
            C = '0' if i == 0 else v(ACC + 4 * ct, 4)
            W, X = v(d + 4 * ct, 4), v(XF + 4 * i, 4)
            a(f'v_mfma_f32_16x16x32_bf16 {v(ACC+4*ct,4)}, {X if isv else W}, {W if isv else X}, {C}')
        if i + 2 < 10:
            for x in reads(i + 2):
                a(x)


a(f'''s_and_b32 s{sT0}, s{sG}, 1
s_cmp_eq_u32 s{sT0}, 1
s_cbranch_scc1 L_kv_v''')
kv_mfmas(False)
a('s_branch L_kv_red\nL_kv_v:')
kv_mfmas(True)
a('L_kv_red:')
a(f'''s_and_b32 s{sT0}, s{sRT}, 1
s_lshl_b32 s{sT0}, s{sT0}, 11
s_add_u32 s{sT0}, s{sT0}, {L_SCR}
v_lshl_add_u32 v{vT2}, v{vLANE}, 4, s{sT0}
s_lshl_b32 s{sT0}, s{sRT}, 2
s_add_u32 s{sT0}, s{sT0}, {L_MISC + M_PKV}
v_mov_b32 v{vT3}, s{sT0}
s_cmp_eq_u32 s{sKH}, 0
s_cbranch_scc1 L_kv_fin
ds_write_b128 v{vT2}, {v(ACC,4)}
ds_write_b128 v{vT2}, {v(ACC+4,4)} offset:1024
s_waitcnt lgkmcnt(0)
s_mov_b64 exec, 1
ds_write_b32 v{vT3}, v{vONE}
s_mov_b64 exec, -1
s_branch L_A_q
L_kv_fin:''')
lds_wait_v(vT3, 1)
K0 = AB
a(f'''ds_read_b128 {v(K0,4)}, v{vT2}
ds_read_b128 {v(K0+4,4)}, v{vT2} offset:1024
s_lshl_b32 s{sT0}, s{sRHO}, 1
s_lshr_b32 s{sT1}, s{sG}, 1
s_add_u32 s{sT0}, s{sT0}, s{sT1}
s_mul_i32 s{sU2}, s{sT0}, {TILE}
s_add_u32 s{sU2}, s{sU2}, {WS_KVT}
s_lshl_b32 s{sT0}, s{sT0}, 1
s_and_b32 s{sT1}, s{sRT}, 1
s_add_u32 s{sT0}, s{sT0}, s{sT1}
s_lshl_b32 s{sT0}, s{sT0}, 1
s_and_b32 s{sT2}, s{sG}, 1
s_add_u32 s{sT0}, s{sT0}, s{sT2}
s_lshl_b32 s{sU3}, s{sT0}, 7
s_add_u32 s{sU3}, s{sU3}, {WS_FKV}
v_and_b32 v8, 15, v{vLANE}
v_lshrrev_b32 v9, 4, v{vLANE}
s_waitcnt lgkmcnt(0)''')
for i in range(8):
    a(f'v_add_f32 v{ACC+i}, v{ACC+i}, v{K0+i}')
a(f'''v_cvt_pk_bf16_f32 v{K0}, v{ACC}, v{ACC+1}
v_cvt_pk_bf16_f32 v{K0+1}, v{ACC+2}, v{ACC+3}
v_cvt_pk_bf16_f32 v{K0+2}, v{ACC+4}, v{ACC+5}
v_cvt_pk_bf16_f32 v{K0+3}, v{ACC+6}, v{ACC+7}
s_cmp_eq_u32 s{sT2}, 1
s_cbranch_scc1 L_kv_finv
s_lshl_b32 s{sT1}, s{sT1}, 4
v_add_u32 v8, s{sT1}, v8
v_lshrrev_b32 v10, 1, v9
v_lshlrev_b32 v10, 9, v10
v_lshl_add_u32 v10, v8, 4, v10
v_and_b32 v11, 1, v9
v_lshl_add_u32 v10, v11, 3, v10
v_lshlrev_b32 v11, 3, v8
buffer_store_dwordx2 {v(K0,2)}, v10, s[{R_WS}:{R_WS+3}], s{sU2} offen sc1
s_mov_b64 exec, 0xffff
buffer_store_dwordx2 {v(K0+2,2)}, v11, s[{R_WS}:{R_WS+3}], s{sU2} offen offset:1024 sc1
s_mov_b64 exec, -1
v_mul_f32 v12, v{ACC}, v{ACC}
v_fmac_f32 v12, v{ACC+1}, v{ACC+1}
v_fmac_f32 v12, v{ACC+2}, v{ACC+2}
v_fmac_f32 v12, v{ACC+3}, v{ACC+3}
s_mov_b64 exec, 0xffff
v_fmac_f32 v12, v{ACC+4}, v{ACC+4}
v_fmac_f32 v12, v{ACC+5}, v{ACC+5}
v_fmac_f32 v12, v{ACC+6}, v{ACC+6}
v_fmac_f32 v12, v{ACC+7}, v{ACC+7}
s_mov_b64 exec, -1
v_mov_b32 v13, v12
s_nop 1
v_permlane16_swap_b32 v12, v13
v_add_f32 v12, v12, v13
v_mov_b32 v13, v12
s_nop 1
v_permlane32_swap_b32 v12, v13
v_add_f32 v12, v12, v13
s_branch L_kv_pub
L_kv_finv:
s_mul_i32 s{sT1}, s{sT1}, 672
s_add_u32 s{sU2}, s{sU2}, s{sT1}
s_add_u32 s{sU2}, s{sU2}, 1280
v_lshrrev_b32 v10, 1, v9
v_mul_u32_u24 v10, 336, v10
v_lshl_add_u32 v10, v8, 4, v10
v_and_b32 v11, 1, v9
v_lshl_add_u32 v10, v11, 3, v10
v_cmp_eq_u32 s[{sM0}:{sM0+1}], 4, v8
v_cmp_gt_u32 s[{sM1}:{sM1+1}], 5, v8
v_mov_b32 v13, 0x3f803f80
v_cndmask_b32 v{K0+2}, v{K0+2}, v13, s[{sM0}:{sM0+1}]
v_cndmask_b32 v{K0+3}, v{K0+3}, v13, s[{sM0}:{sM0+1}]
buffer_store_dwordx2 {v(K0,2)}, v10, s[{R_WS}:{R_WS+3}], s{sU2} offen sc1
s_mov_b64 exec, s[{sM1}:{sM1+1}]
buffer_store_dwordx2 {v(K0+2,2)}, v10, s[{R_WS}:{R_WS+3}], s{sU2} offen offset:256 sc1
s_mov_b64 exec, -1
v_cmp_gt_u32 s[{sM1}:{sM1+1}], 4, v8
v_and_b32 v12, 0x7fffffff, v{ACC}
v_and_b32 v13, 0x7fffffff, v{ACC+1}
v_max_u32 v12, v12, v13
v_and_b32 v13, 0x7fffffff, v{ACC+2}
v_and_b32 v14, 0x7fffffff, v{ACC+3}
v_max3_u32 v12, v12, v13, v14
s_mov_b64 exec, s[{sM1}:{sM1+1}]
v_and_b32 v13, 0x7fffffff, v{ACC+4}
v_and_b32 v14, 0x7fffffff, v{ACC+5}
v_max3_u32 v12, v12, v13, v14
v_and_b32 v13, 0x7fffffff, v{ACC+6}
v_and_b32 v14, 0x7fffffff, v{ACC+7}
v_max3_u32 v12, v12, v13, v14
s_mov_b64 exec, -1
v_mov_b32 v13, v12
s_nop 1
v_permlane16_swap_b32 v12, v13
v_max_u32 v12, v12, v13
v_mov_b32 v13, v12
s_nop 1
v_permlane32_swap_b32 v12, v13
v_max_u32 v12, v12, v13
L_kv_pub:''')
for r in (8, 4, 2, 1):
    a(f'v_max_u32_dpp v12, v12, v12 row_ror:{r} row_mask:0xf bank_mask:0xf')
a(f'''v_mov_b32 v13, v12
v_mov_b32 v12, s{sNON}
s_waitcnt vmcnt(0)
s_mov_b64 exec, 1
buffer_store_dwordx2 v[12:13], off, s[{R_WS}:{R_WS+3}], s{sU3} sc1
s_mov_b64 exec, -1''')
stamp(3)
a('s_branch L_A_q')

a('L_A_rb:')
x_scratch_addrs()
a('s_barrier')
stamp(1)
x_transpose(0 + (1 if STAMPS else 0))
a('s_branch L_A_q')

a('L_A_duty:')
srd(R_B, P_WQ, 640 * 1280)
pattern_regs(vPAT, 'swap')
a('s_barrier')
x_loads()
a(f's_mul_i32 s{sU2}, s{sG}, 160')
for i in range(5):
    a(f'''s_add_u32 s{sT0}, s{sRANK}, {4*i}
    s_mul_i32 s{sT1}, s{sT0}, 40960
    s_add_u32 s{sT1}, s{sT1}, s{sU2}
    s_mul_i32 s{sT0}, s{sT0}, 5120''')
    for j in range(5):
        a(f'''s_add_u32 m0, s{sT0}, {L_WQ + 1024*j}
        s_nop 0
        buffer_load_dwordx4 v{vPAT+j}, s[{R_B}:{R_B+3}], s{sT1} offen lds''')
x_scratch_addrs()
stamp(1)
x_transpose(25 + (1 if STAMPS else 0))
a('s_waitcnt vmcnt(0)')
arrive(M_D)

a('L_A_q:')
gemm_lanepart(vGA)
a(f'''s_mul_i32 s{sT0}, s{sKH}, 51200
s_add_u32 s{sT0}, s{sT0}, {L_WQ}
v_add_u32 v{vGA}, s{sT0}, v{vGA}''')
lds_wait(M_D, 4)
stamp(4)
gemm(XF, ACC, AB, lambda i: (vGA, 5120 * i))
arrive(M_E)
a(f'''v_and_b32 v{vT0}, 15, v{vLANE}
v_lshrrev_b32 v{vT1}, 4, v{vLANE}
v_mul_u32_u24 v{vT0}, 336, v{vT0}
v_lshl_add_u32 v{vT0}, v{vT1}, 4, v{vT0}
s_mul_i32 s{sT0}, s{sKH}, 21504
s_mul_i32 s{sT1}, s{sRT}, 5376
s_add_u32 s{sT0}, s{sT0}, s{sT1}
s_add_u32 s{sT0}, s{sT0}, {L_QP}
v_add_u32 v8, s{sT0}, v{vT0}''')
lds_wait(M_E, 8)
for ct in range(5):
    a(f'ds_write_b128 v8, {v(ACC+4*ct,4)} offset:{64*ct}')
a('s_waitcnt lgkmcnt(0)')
arrive(M_F)

SA, SB, OA, OB = 16, 32, 48, 64
KF = [80, 88]
VF = [96, 104]
QA1, QA2, QB1, QB2 = 112, 116, 120, 124
vIDX, vK, vK2, vV = 126, 127, 128, 129
vNA, vNB = 130, 131
vMA, vMB = 132, 133
sSLOW = sU5

a(f'''v_and_b32 v{vT0}, 31, v{vLANE}
v_lshrrev_b32 v{vT1}, 5, v{vLANE}
v_mul_u32_u24 v{vT0}, 336, v{vT0}
s_mul_i32 s{sT0}, s{sRT}, 80
s_add_u32 s{sT0}, s{sT0}, {L_QP}
v_add_u32 v9, s{sT0}, v{vT0}
v_lshl_add_u32 v8, v{vT1}, 5, v9
v_cmp_gt_u32 s[{sM0}:{sM0+1}], 32, v{vLANE}
s_mul_i32 s{sT0}, s{sKH}, {4*TILE}
s_add_u32 s{sT0}, s{sT0}, {L_SL0}
v_lshl_add_u32 v{vK}, v{vLANE}, 4, s{sT0}
v_and_b32 v{vT0}, 31, v{vLANE}
v_lshl_add_u32 v{vK2}, v{vT0}, 3, s{sT0}
v_min_u32 v{vT2}, 20, v{vT0}
v_subrev_u32 v{vT3}, 24, v{vT0}
v_cmp_le_u32 s[{sM1}:{sM1+1}], 28, v{vT0}
v_mul_u32_u24 v{vT1}, 336, v{vT1}
v_cndmask_b32 v{vT2}, v{vT2}, v{vT3}, s[{sM1}:{sM1+1}]
v_lshl_add_u32 v{vT1}, v{vT2}, 4, v{vT1}
v_add_u32 v{vV}, s{sT0}, v{vT1}
v_mov_b32 v{vIDX}, 0xdddddddd''')
lds_wait(M_F, 8)
QSCALE = 20 ** -0.5 * math.log2(math.e)
for rb, (Q1, Q2, vN) in enumerate(((QA1, QA2, vNA), (QB1, QB2, vNB))):
    o = 32 * 336 * rb
    T = 16 + 24 * rb
    a(f'''ds_read_b128 {v(T,4)}, v8 offset:{o}
    ds_read_b128 {v(T+4,4)}, v8 offset:{o+16}
    ds_read_b128 {v(T+8,4)}, v9 offset:{o+64}
    ds_read_b128 {v(T+12,4)}, v8 offset:{o+21504}
    ds_read_b128 {v(T+16,4)}, v8 offset:{o+21504+16}
    ds_read_b128 {v(T+20,4)}, v9 offset:{o+21504+64}''')
a(f's_mov_b32 s{sT0}, {f32(QSCALE)}')
for rb, (Q1, Q2, vN) in enumerate(((QA1, QA2, vNA), (QB1, QB2, vNB))):
    T = 16 + 24 * rb
    a(f's_waitcnt lgkmcnt({6 if rb == 0 else 0})')
    for i in range(12):
        a(f'v_add_f32 v{T+i}, v{T+i}, v{T+12+i}')
    for i in range(8):
        a(f'v_mul_f32 v{T+i}, s{sT0}, v{T+i}')
    for i in range(8, 12):
        a(f'v_mul_f32 v{T+i}, s{sT0}, v{T+i}')
        a(f'v_cndmask_b32 v{T+i}, 0, v{T+i}, s[{sM0}:{sM0+1}]')
    a(f'v_mul_f32 v{vN}, v{T}, v{T}')
    for i in range(1, 12):
        a(f'v_fmac_f32 v{vN}, v{T+i}, v{T+i}')
    for i in range(4):
        a(f'v_cvt_pk_bf16_f32 v{Q1+i}, v{T+2*i}, v{T+2*i+1}')
    for i in range(2):
        a(f'v_cvt_pk_bf16_f32 v{Q2+i}, v{T+8+2*i}, v{T+9+2*i}')
    a(f'''v_mov_b32 v{vT0}, v{vN}
    s_nop 1
    v_permlane32_swap_b32 v{vN}, v{vT0}
    v_add_f32 v{vN}, v{vN}, v{vT0}''')
a(f'v_max_u32 v{vNA}, v{vNA}, v{vNB}')
for i in range(16):
    a(f'v_mov_b32 v{OA+i}, 0')
    a(f'v_mov_b32 v{OB+i}, 0')
for i in range(8, 16):
    a(f'v_mov_b32 v{SB+i}, 0')
for i in range(4, 8):
    a(f'v_mov_b32 v{VF[1]+i}, 0')
stamp(5)
a('s_barrier')
stamp(6)


def rdK(buf, off):
    return [f'ds_read_b128 {v(KF[buf],4)}, v{vK} offset:{off}',
            f'ds_read_b64 {v(KF[buf]+4,2)}, v{vK2} offset:{off+1024}']


def rdV(buf, off):
    return [f'ds_read_b128 {v(VF[buf],4)}, v{vV} offset:{off+1280}',
            f'ds_read_b128 {v(VF[buf]+4,4)}, v{vV} offset:{off+1280+672}']


def qk1(S, kb, Q1):
    return f'v_mfma_f32_32x32x16_bf16 {v(S,16)}, {v(KF[kb],4)}, {v(Q1,4)}, 0'


def qk2(S, kb, Q2):
    return f'v_mfma_f32_32x32x8bf16_1k {v(S,16)}, {v(KF[kb]+4,2)}, {v(Q2,2)}, {v(S,16)}'


def pv(O, vb, j, S):
    return f'v_smfmac_f32_32x32x32_bf16 {v(O,16)}, {v(VF[vb]+4*j,4)}, {v(S+8*j,8)}, v{vIDX}'


def exps(S, i0, i1):
    return [f'v_exp_f32 v{S+i}, v{S+i}' for i in range(i0, i1)]


a(f'ds_read_b64 v[8:9], v{vMISC} offset:{M_KMAX}')
for x in rdK(0, 0) + rdV(0, 0):
    a(x)
a(f'''s_mov_b32 s{sT0}, {f32(3600.0)}
s_mov_b32 s{sT1}, {f32(2.0**40)}
s_waitcnt lgkmcnt(4)
v_mul_f32 v8, v8, v{vNA}
v_cmp_nle_f32 s[{sM0}:{sM0+1}], v8, s{sT0}
v_cmp_lt_u32 s[{sM1}:{sM1+1}], s{sT1}, v9
s_or_b64 vcc, s[{sM0}:{sM0+1}], s[{sM1}:{sM1+1}]''')
if FORCE_SLOW:
    a('s_branch L_slow')
else:
    a('s_cbranch_vccnz L_slow')
a(f'''s_mov_b32 s{sSLOW}, 0
s_waitcnt lgkmcnt(2)
{qk1(SA,0,QA1)}
{qk2(SA,0,QA2)}
s_mov_b32 s{sLOOP}, 4
s_waitcnt lgkmcnt(0)
s_setprio 2
s_nop 7''')
a('.p2align 6\nL_attn:')
for st in range(8):
    sl, i = st >> 2, st & 3
    cur = st & 1
    nxt = cur ^ 1
    nsl, ni = (sl, i + 1) if i < 3 else (sl ^ 1, 0)
    noff = nsl * SLOTD + ni * TILE
    L = [pv(OB, nxt, 1, SB)] + rdK(nxt, noff) + exps(SA, 0, 3) + [qk1(SB, cur, QB1)] + exps(SA, 3, 7) \
        + [qk2(SB, cur, QB2)] + exps(SA, 7, 11) + [pv(OA, cur, 0, SA)] + exps(SA, 11, 16) + rdV(nxt, noff) \
        + exps(SB, 0, 1) + [pv(OA, cur, 1, SA)] + exps(SB, 1, 4) + ['s_waitcnt lgkmcnt(2)', qk1(SA, nxt, QA1)] \
        + exps(SB, 4, 8) + [qk2(SA, nxt, QA2)] + exps(SB, 8, 12) + [pv(OB, cur, 0, SB)] + exps(SB, 12, 16) \
        + ['s_waitcnt lgkmcnt(0)']
    if i == 2:
        L += ['s_barrier', 's_setprio 3']
    else:
        L += ['s_setprio %d' % {3: 2, 0: 1, 1: 0}[i]]
    if st == 7:
        L += [f's_sub_u32 s{sLOOP}, s{sLOOP}, 1', f's_cmp_lg_u32 s{sLOOP}, 0', 's_cbranch_scc1 L_attn']
    for x in L:
        a(x)
a(pv(OB, 1, 1, SB))
a('s_setprio 0')
a('s_branch L_epi')

a('L_slow:')
a(f'''s_mov_b32 s{sSLOW}, 1
v_mov_b32 v{vMA}, 0xff7fffff
v_mov_b32 v{vMB}, 0xff7fffff
s_mov_b32 s{sLOOP}, 0
s_waitcnt lgkmcnt(0)
L_slow_tile:''')
for x in rdK(0, 0) + rdV(0, 0):
    a(x)
a('s_waitcnt lgkmcnt(0)')
for (S, O, Q1, Q2, vM) in ((SA, OA, QA1, QA2, vMA), (SB, OB, QB1, QB2, vMB)):
    a(qk1(S, 0, Q1))
    a(qk2(S, 0, Q2))
    a(f'v_max3_f32 v8, v{S}, v{S+1}, v{vM}')
    for i in range(2, 16, 2):
        a(f'v_max3_f32 v8, v{S+i}, v{S+i+1}, v8')
    a(f'''v_mov_b32 v9, v8
    s_nop 1
    v_permlane32_swap_b32 v8, v9
    v_max_f32 v8, v8, v9
    v_sub_f32 v9, v{vM}, v8
    v_exp_f32 v9, v9
    v_mov_b32 v{vM}, v8''')
    for i in range(16):
        a(f'v_sub_f32 v{S+i}, v{S+i}, v8')
    for i in range(16):
        a(f'v_mul_f32 v{O+i}, v{O+i}, v9')
    for x in exps(S, 0, 16):
        a(x)
    a(pv(O, 0, 0, S))
    a(pv(O, 0, 1, S))
a(f'''s_add_u32 s{sLOOP}, s{sLOOP}, 1
s_and_b32 s{sT0}, s{sLOOP}, 3
s_mov_b32 s{sT1}, {TILE}
s_cmp_lg_u32 s{sT0}, 0
s_cbranch_scc1 L_slow_adv
s_barrier
s_and_b32 s{sT0}, s{sLOOP}, 4
s_cmp_lg_u32 s{sT0}, 0
s_mov_b32 s{sT1}, {SLOTD - 3*TILE}
s_cselect_b32 s{sT1}, s{sT1}, {(-SLOTD - 3*TILE) & 0xffffffff}
L_slow_adv:
v_add_u32 v{vK}, s{sT1}, v{vK}
v_add_u32 v{vK2}, s{sT1}, v{vK2}
v_add_u32 v{vV}, s{sT1}, v{vV}
s_cmp_lt_u32 s{sLOOP}, 32
s_cbranch_scc1 L_slow_tile''')

a('L_epi:')
stamp(7)
a(f'''s_lshl_b32 s{sT0}, s{sRT}, 12
s_mul_i32 s{sT1}, s{sKH}, {SLOTD}
s_add_u32 s{sT1}, s{sT1}, s{sT0}
s_add_u32 s{sT1}, s{sT1}, {L_SL0}
v_lshl_add_u32 v8, v{vLANE}, 4, s{sT1}
s_xor_b32 s{sT2}, s{sKH}, 1
s_mul_i32 s{sT2}, s{sT2}, {SLOTD}
s_add_u32 s{sT2}, s{sT2}, s{sT0}
s_add_u32 s{sT2}, s{sT2}, {L_SL0}
v_lshl_add_u32 v9, v{vLANE}, 4, s{sT2}
s_lshl_b32 s{sT0}, s{sW}, 2
s_add_u32 s{sT1}, s{sT0}, {L_MISC + M_PE1}
v_mov_b32 v10, s{sT1}
s_xor_b32 s{sT1}, s{sT1}, 16
v_mov_b32 v11, s{sT1}
s_cmp_eq_u32 s{sKH}, 0
s_cbranch_scc1 L_e_k0''')
for i in range(16):
    a(f'v_swap_b32 v{OA+i}, v{OB+i}')
a(f'v_swap_b32 v{vMA}, v{vMB}')
a('L_e_k0:')
a(f'v_mov_b32 v{OB+13}, v{vMB}')
for q in range(4):
    a(f'ds_write_b128 v8, {v(OB+4*q,4)} offset:{1024*q}')
a(f'''s_waitcnt lgkmcnt(0)
s_mov_b64 exec, 1
ds_write_b32 v10, v{vONE}
s_mov_b64 exec, -1''')
a(f'''s_lshl_b32 s{sT0}, s{sG}, 2
s_add_u32 s{sT0}, s{sT0}, s{sRT}          ; H
s_lshr_b32 s{sT1}, s{sT0}, 3
s_mul_i32 s{sT1}, s{sT1}, 5               ; 5*(H>>3)
s_bfe_u32 s{sT2}, s{sT0}, 0x20001
s_add_u32 s{sT2}, s{sT2}, s{sT1}
s_lshl_b32 s{sT3}, s{sRHO}, 2
s_lshl_b32 s{sT4}, s{sKH}, 1
s_add_u32 s{sT3}, s{sT3}, s{sT4}
s_mul_i32 s{sT3}, s{sT3}, 20480
s_add_u32 s{sT3}, s{sT3}, {WS_OX}
s_lshl_b32 s{sT2}, s{sT2}, 10
s_add_u32 s{sU0}, s{sT2}, s{sT3}
s_and_b32 s{sT2}, s{sT0}, 1
s_lshl_b32 s{sT2}, s{sT2}, 9
s_add_u32 s{sU0}, s{sU0}, s{sT2}          ; + kq(=2*(H&1))*256
s_add_u32 s{sT1}, s{sT1}, 4
s_lshl_b32 s{sT1}, s{sT1}, 10
s_add_u32 s{sU1}, s{sT1}, s{sT3}
s_bfe_u32 s{sT1}, s{sT0}, 0x10002         ; (hh>>2)
s_lshl_b32 s{sT1}, s{sT1}, 9
s_add_u32 s{sU1}, s{sU1}, s{sT1}
s_and_b32 s{sT1}, s{sT0}, 1
s_lshl_b32 s{sT1}, s{sT1}, 8
s_add_u32 s{sU1}, s{sU1}, s{sT1}
s_bfe_u32 s{sT1}, s{sT0}, 0x10001
s_lshl_b32 s{sT1}, s{sT1}, 3
s_add_u32 s{sU1}, s{sU1}, s{sT1}
s_lshl_b32 s{sT1}, s{sRHO}, 1
s_add_u32 s{sT1}, s{sT1}, s{sKH}
s_lshl_b32 s{sT1}, s{sT1}, 5
s_add_u32 s{sT1}, s{sT1}, s{sT0}
s_lshl_b32 s{sU2}, s{sT1}, 7
s_add_u32 s{sU2}, s{sU2}, {WS_FO}
v_bfe_u32 v12, v{vLANE}, 4, 1
v_mul_u32_u24 v12, 20480, v12
v_and_b32 v13, 15, v{vLANE}
v_lshl_add_u32 v13, v13, 4, v12
v_lshrrev_b32 v12, 5, v{vLANE}
v_lshl_add_u32 v12, v12, 8, v13
v_cmp_gt_u32 s[{sM0}:{sM0+1}], 32, v{vLANE}''')
lds_wait_v(11, 1)
for q in range(4):
    a(f'ds_read_b128 {v(SA+4*q,4)}, v9 offset:{1024*q}')
a(f'''s_cmp_eq_u32 s{sSLOW}, 0
s_waitcnt lgkmcnt(0)
s_cbranch_scc1 L_e_fast
v_max_f32 v14, v{vMA}, v{SA+13}
v_sub_f32 v15, v{vMA}, v14
v_sub_f32 v14, v{SA+13}, v14
v_exp_f32 v15, v15
v_exp_f32 v14, v14
s_nop 0''')
for i in range(13):
    a(f'v_mul_f32 v{OA+i}, v{OA+i}, v15')
    a(f'v_mul_f32 v{SA+i}, v{SA+i}, v14')
a('L_e_fast:')
for i in range(13):
    a(f'v_add_f32 v{OA+i}, v{OA+i}, v{SA+i}')
a(f'''v_cndmask_b32 v14, v{OA+8}, v{OA+12}, s[{sM0}:{sM0+1}]
v_rcp_f32 v14, v14
s_nop 0''')
for i in range(12):
    a(f'v_mul_f32 v{OA+i}, v{OA+i}, v14')
for i in range(6):
    a(f'v_cvt_pk_bf16_f32 v{SA+i}, v{OA+2*i}, v{OA+2*i+1}')
a(f'''buffer_store_dwordx4 {v(SA,4)}, v12, s[{R_WS}:{R_WS+3}], s{sU0} offen sc1
s_mov_b64 exec, s[{sM0}:{sM0+1}]
buffer_store_dwordx2 {v(SA+4,2)}, v13, s[{R_WS}:{R_WS+3}], s{sU1} offen sc1
s_mov_b64 exec, -1''')
vOA = 120
vOL = 130
gemm_lanepart(vOL)
a(f's_cmp_eq_u32 s{sKH}, 0')
for i in range(10):
    a(f'''s_mov_b32 s{sT0}, {WO_UNIT[i]}
    s_cselect_b32 s{sT0}, s{sT0}, {WO_UNIT[10+i]}
    v_add_u32 v{vOA+i}, s{sT0}, v{vOL}''')
a(f'''v_mov_b32 v14, s{sNON}
s_waitcnt vmcnt(0)
s_mov_b64 exec, 1
buffer_store_dword v14, off, s[{R_WS}:{R_WS+3}], s{sU2} sc1
s_mov_b64 exec, -1''')
stamp(8)
a(f'''s_lshl_b32 s{sT1}, s{sRHO}, 1
s_lshr_b32 s{sT2}, s{sRT}, 1
s_add_u32 s{sT1}, s{sT1}, s{sT2}
s_lshl_b32 s{sT1}, s{sT1}, 1
s_add_u32 s{sT1}, s{sT1}, s{sKH}
s_lshl_b32 s{sT1}, s{sT1}, 11
s_add_u32 s{sT1}, s{sT1}, {WS_FO}
v_and_b32 v12, 15, v{vLANE}
v_lshlrev_b32 v12, 7, v12
s_lshl_b32 s{sT2}, s{sRHO}, 2
s_add_u32 s{sT2}, s{sT2}, s{sRT}
s_mul_i32 s{sT2}, s{sT2}, 20480
s_mul_i32 s{sT3}, s{sKH}, 10240
s_add_u32 s{sT2}, s{sT2}, s{sT3}
s_add_u32 s{sU0}, s{sT2}, {WS_OX}
v_lshlrev_b32 v13, 4, v{vLANE}
s_mov_b32 s{sSPIN}, {SPIN}
L_e_poll:
buffer_load_dword v14, v12, s[{R_WS}:{R_WS+3}], s{sT1} offen sc1
s_waitcnt vmcnt(0)
v_cmp_ne_u32 vcc, s{sNON}, v14
s_cbranch_vccz L_e_go
s_sub_u32 s{sSPIN}, s{sSPIN}, 1
s_cmp_lg_u32 s{sSPIN}, 0
s_cbranch_scc1 L_e_poll
L_e_go:''')
stamp(9)
for i in range(10):
    if i in (4, 8):
        a(f's_add_u32 s{sU0}, s{sU0}, 4096')
    a(f'buffer_load_dwordx4 {v(XF+4*i,4)}, v13, s[{R_WS}:{R_WS+3}], s{sU0} offen offset:{1024*(i&3)} sc1')
srd(R_C, P_OUT, 2048 * 2560)
gemm(XF, ACC, AB, lambda i: (vOA + i, 0), waits={i: f's_waitcnt vmcnt({9-i})' for i in range(10)})
stamp(10)
a(f'''s_lshl_b32 s{sT0}, s{sW}, 2
s_add_u32 s{sT1}, s{sT0}, {L_MISC + M_PE2}
v_mov_b32 v10, s{sT1}
s_xor_b32 s{sT1}, s{sT1}, 16
v_mov_b32 v11, s{sT1}
s_lshl_b32 s{sT0}, s{sRHO}, 6
s_lshl_b32 s{sT1}, s{sRT}, 4
s_add_u32 s{sT0}, s{sT0}, s{sT1}
s_mul_i32 s{sT0}, s{sT0}, 2560
s_mul_i32 s{sT1}, s{sG}, 160
s_add_u32 s{sU0}, s{sT0}, s{sT1}
v_and_b32 v12, 15, v{vLANE}
v_mul_u32_u24 v12, 2560, v12
v_lshrrev_b32 v13, 4, v{vLANE}
v_lshl_add_u32 v12, v13, 3, v12
s_cmp_eq_u32 s{sKH}, 0
s_cbranch_scc0 L_e_r1''')
for kh, (send, keep) in enumerate((((3, 4), (0, 1, 2)), ((0, 1, 2), (3, 4)))):
    if kh == 1:
        a('L_e_r1:')
    for n, ct in enumerate(send):
        a(f'ds_write_b128 v9, {v(ACC+4*ct,4)} offset:{1024*n}')
    a(f'''s_waitcnt lgkmcnt(0)
    s_mov_b64 exec, 1
    ds_write_b32 v10, v{vONE}
    s_mov_b64 exec, -1''')
    lds_wait_v(11, 1)
    for n, ct in enumerate(keep):
        a(f'ds_read_b128 {v(AB+4*n,4)}, v8 offset:{1024*n}')
    for n, ct in enumerate(keep):
        a(f's_waitcnt lgkmcnt({len(keep)-1-n})')
        for i in range(4):
            a(f'v_add_f32 v{ACC+4*ct+i}, v{ACC+4*ct+i}, v{AB+4*n+i}')
        a(f'''v_cvt_pk_bf16_f32 v{AB+4*n}, v{ACC+4*ct}, v{ACC+4*ct+1}
        v_cvt_pk_bf16_f32 v{AB+4*n+1}, v{ACC+4*ct+2}, v{ACC+4*ct+3}
        buffer_store_dwordx2 {v(AB+4*n,2)}, v12, s[{R_C}:{R_C+3}], s{sU0} offen offset:{32*ct}''')
    if STAMPS:
        a('s_waitcnt vmcnt(0)')
    stamp(11)
    a('s_endpgm')

a('L_S:')
a(f'''s_sub_u32 s{sSI}, s{sW}, 8
s_mul_i32 s{sCH}, s{sRHO}, 20
s_lshl_b32 s{sT0}, s{sG}, 1
s_mul_i32 s{sT1}, s{sG}, 3
s_sub_u32 s{sT1}, s{sT1}, 4
s_cmp_lt_u32 s{sG}, 4
s_cselect_b32 s{sT0}, s{sT0}, s{sT1}
s_cselect_b32 s{sU4}, 2, 3
s_add_u32 s{sCH}, s{sCH}, s{sT0}
s_add_u32 s{sCH}, s{sCH}, s{sSI}
s_cmp_lt_u32 s{sSI}, s{sU4}
s_cbranch_scc1 L_kgen
s_cmp_eq_u32 s{sSI}, s{sU4}
s_cbranch_scc1 L_tu
buffer_load_dword v8, off, s[{R_WS}:{R_WS+3}], 0 sc1
s_barrier
s_waitcnt vmcnt(0)
v_readfirstlane_b32 s{sNON}, v8
s_add_u32 s{sNON}, s{sNON}, {NONCE_K}
s_branch L_poll_kv''')

UR = 16
a('L_tu:')
srd(R_A, P_U, 2048 * 1280)
a(f'buffer_load_dword v8, off, s[{R_WS}:{R_WS+3}], 0 sc1')
pattern_regs(56, 'lin')
a(f'''s_mul_i32 s{sT0}, s{sRHO}, {64*1280}
s_mul_i32 s{sT1}, s{sG}, 160
s_add_u32 s{sT0}, s{sT0}, s{sT1}
s_add_u32 s{sT1}, s{sT0}, 40960''')
for j in range(10):
    a(f'buffer_load_dwordx4 {v(UR+4*j,4)}, v{56+j%5}, s[{R_A}:{R_A+3}], s{sT0 if j < 5 else sT1} offen')
a(f'''s_barrier
s_cmp_lt_u32 s{sG}, 4
s_mov_b32 s{sU0}, {L_SL0 + 21504}
s_cselect_b32 s{sU0}, s{sU0}, {L_SL0}
s_cbranch_scc0 L_tu_go''')
lds_wait(M_X, 8)
a(f'''L_tu_go:
v_lshl_add_u32 v9, v{vLANE}, 4, s{sU0}
v_lshrrev_b32 v{vT0}, 4, v{vLANE}
v_bfe_u32 v{vT1}, v{vLANE}, 2, 2
v_lshl_add_u32 v{vT1}, v{vT0}, 3, v{vT1}
v_mul_u32_u24 v{vT1}, 160, v{vT1}
v_and_b32 v{vT2}, 3, v{vLANE}
v_lshl_add_u32 v{vT1}, v{vT2}, 3, v{vT1}
v_add_u32 v10, s{sU0}, v{vT1}
v_and_b32 v{vT1}, 15, v{vLANE}
v_lshlrev_b32 v{vT1}, 12, v{vT1}
v_lshl_add_u32 v11, v{vT0}, 4, v{vT1}
s_mul_i32 s{sT0}, s{sG}, {80*4096}
s_lshl_b32 s{sT1}, s{sRHO}, 7
s_add_u32 s{sT0}, s{sT0}, s{sT1}
s_add_u32 s{sU1}, s{sT0}, {WS_UT}
s_waitcnt vmcnt(10)
v_readfirstlane_b32 s{sNON}, v8
s_add_u32 s{sNON}, s{sNON}, {NONCE_K}''')
for j in range(10):
    a(f'''s_waitcnt vmcnt({9-j})
    ds_write_b128 v9, {v(UR+4*j,4)} offset:{1024*j}''')
for ct in range(5):
    for h in range(2):
        d = UR + 8 * ct + 4 * h
        for e in range(2):
            a(f'ds_read_b64_tr_b16 {v(d+2*e,2)}, v10 offset:{(32*h+4*e)*160 + 32*ct}')
    if ct == 2:
        pass
    a('s_waitcnt lgkmcnt(0)')
    for h in range(2):
        a(f'buffer_store_dwordx4 {v(UR+8*ct+4*h,4)}, v11, s[{R_WS}:{R_WS+3}], s{sU1} offen offset:{64*h} sc1')
    a(f's_add_u32 s{sU1}, s{sU1}, 65536')
lds_wait(M_X, 8)
a(f'''s_lshl_b32 s{sT0}, s{sRHO}, 3
s_add_u32 s{sT0}, s{sT0}, s{sG}
s_lshl_b32 s{sT0}, s{sT0}, 7
s_add_u32 s{sT0}, s{sT0}, {WS_FU}
v_mov_b32 v8, s{sNON}
s_waitcnt vmcnt(0)
s_mov_b64 exec, 1
buffer_store_dword v8, off, s[{R_WS}:{R_WS+3}], s{sT0} sc1
s_mov_b64 exec, -1''')
stamp(2)
a(f'''s_cmp_eq_u32 s{sSI}, 3
s_cbranch_scc1 L_poll_kv
s_barrier''')
for n in range(8):
    a('s_barrier')
a('s_branch L_yout')

a('L_poll_kv:')
vS_L16 = 60
a(f'''v_lshlrev_b32 v9, 7, v{vLANE}
v_lshlrev_b32 v{vS_L16}, 4, v{vLANE}
s_mov_b32 s{sT0}, {WS_FKV}
s_mov_b32 s{sT1}, {WS_FKV + 8192}
s_mov_b32 s{sT2}, {WS_FKV + 16384}
s_mov_b32 s{sT3}, {WS_FKV + 24576}
v_mov_b32 v8, s{sNON}
s_mov_b64 exec, 1
ds_write_b32 v{vMISC}, v8 offset:{M_NONCE}
s_mov_b64 exec, -1
s_mov_b32 s{sSPIN}, {SPIN}
L_pk:''')
for i in range(4):
    a(f'buffer_load_dwordx2 {v(16+2*i,2)}, v9, s[{R_WS}:{R_WS+3}], s{sT0+i} offen sc1')
a(f'''s_waitcnt vmcnt(0)
v_xor_b32 v10, s{sNON}, v16
v_xor_b32 v11, s{sNON}, v18
v_xor_b32 v12, s{sNON}, v20
v_xor_b32 v13, s{sNON}, v22
v_or_b32 v10, v10, v11
v_or3_b32 v10, v10, v12, v13
v_cmp_ne_u32 vcc, 0, v10
s_cbranch_vccz L_pk_go
s_sub_u32 s{sSPIN}, s{sSPIN}, 1
s_cmp_lg_u32 s{sSPIN}, 0
s_cbranch_scc1 L_pk
L_pk_go:''')
stamp(3)


def kv_dma(n):
    a(f'''s_add_u32 s{sT0}, s{sXCD}, {n}
    s_and_b32 s{sT0}, s{sT0}, 7
    s_mul_i32 s{sT0}, s{sT0}, {GROUP}
    s_add_u32 s{sT0}, s{sT0}, {WS_KVT}''')
    base = L_SL0 + (n & 1) * SLOTD
    for i in range(21):
        if i and i % 4 == 0:
            a(f's_add_u32 s{sT0}, s{sT0}, 4096')
        if i % 4 == 0:
            a(f's_mov_b32 m0, {base + 1024*i}\ns_nop 0')
        a(f'buffer_load_dwordx4 v{vS_L16}, s[{R_WS}:{R_WS+3}], s{sT0} offen offset:{1024*(i&3)} sc1 lds')


kv_dma(0)
a(f'''v_max_u32 v10, v17, v19
v_max3_u32 v10, v10, v21, v23''')
for r in (8, 4, 2):
    a(f'v_max_u32_dpp v10, v10, v10 row_ror:{r} row_mask:0xf bank_mask:0xf')
a(f'''v_mov_b32 v11, v10
s_nop 1
v_permlane16_swap_b32 v10, v11
v_max_u32 v10, v10, v11
v_mov_b32 v11, v10
s_nop 1
v_permlane32_swap_b32 v10, v11
v_max_u32 v10, v10, v11
v_lshl_add_u32 v11, v{vLANE}, 2, v{vMISC}
s_mov_b64 exec, 3
ds_write_b32 v11, v10 offset:{M_KMAX}
s_mov_b64 exec, -1''')
srd(R_A, P_WO, 640 * 1280)
vWN, vWL = 64, 70
pattern_regs(vWN, 'won')
pattern_regs(vWL, 'wol')
a(f's_mul_i32 s{sU0}, s{sG}, 160')


def wo_unit(st):
    sb, k = divmod(st, 5)
    row0 = 160 * sb + (40 * k if k < 4 else 0)
    pat = vWN if k < 4 else vWL
    a(f's_add_u32 s{sT0}, s{sU0}, {row0*1280}')
    for j in range(5):
        a(f'''s_mov_b32 m0, {WO_UNIT[st] + 1024*j}
        s_nop 0
        buffer_load_dwordx4 v{pat+j}, s[{R_A}:{R_A+3}], s{sT0} offen lds''')


a('s_waitcnt vmcnt(0) lgkmcnt(0)')
stamp(5)
a('s_barrier')
a('s_setprio 3')
kv_dma(1)
wo_unit(0)
a('s_waitcnt vmcnt(5)\ns_barrier')
plan = {0: [1, 2], 1: [3, 4], 2: [5, 6], 3: [7, 8], 4: [9, 10], 5: [11, 12], 6: [13, 14, 15, 16, 17, 18, 19]}
for n in range(7):
    if n + 2 < 8:
        kv_dma(n + 2)
    if n == 6:
        a(f'''s_lshl_b32 s{sT0}, s2, 7
        s_add_u32 s{sT0}, s{sT0}, {WS_FY}
        v_mov_b32 v8, s{sNON}
        s_mov_b64 exec, 1
        buffer_store_dword v8, off, s[{R_WS}:{R_WS+3}], s{sT0} sc1
        s_mov_b64 exec, -1''')
    for st in plan[n]:
        wo_unit(st)
    if n == 1:
        a(f'''s_cmp_lg_u32 s2, 0
        s_cbranch_scc1 L_noz
        s_mov_b32 s{sSPIN}, {SPIN}
        s_mov_b32 s{sT0}, {WS_FU}
        s_mov_b32 s{sT1}, {WS_FU + 8192}
        s_mov_b32 s{sT2}, {WS_FU + 16384}
        s_mov_b32 s{sT3}, {WS_FU + 24576}
        L_zp:''')
        for i in range(4):
            a(f'buffer_load_dword v{16+i}, v9, s[{R_WS}:{R_WS+3}], s{sT0+i} offen sc1')
        a(f'''s_waitcnt vmcnt(0)
        v_xor_b32 v10, s{sNON}, v16
        v_xor_b32 v11, s{sNON}, v17
        v_xor_b32 v12, s{sNON}, v18
        v_xor_b32 v13, s{sNON}, v19
        v_or_b32 v10, v10, v11
        v_or3_b32 v10, v10, v12, v13
        v_cmp_ne_u32 vcc, 0, v10
        s_cbranch_vccz L_zp_go
        s_sub_u32 s{sSPIN}, s{sSPIN}, 1
        s_cmp_lg_u32 s{sSPIN}, 0
        s_cbranch_scc1 L_zp
        L_zp_go:
        v_mov_b32 v8, s{sNON}
        s_mov_b64 exec, 1
        buffer_store_dword v8, off, s[{R_WS}:{R_WS+3}], 0 sc1
        s_mov_b64 exec, -1
        s_waitcnt vmcnt(0)
        L_noz:''')
    if n < 6:
        a(f's_waitcnt vmcnt({5*len(plan[n])})')
    else:
        a('s_waitcnt vmcnt(0)')
    a('s_barrier')
a('s_branch L_yout')

a('L_kgen:')
PRM = 16
vLDT, vDSK = 28, 29
srd(R_A, P_LA, 640 * 384)
srd(R_B, P_AI, 640 * 384)
srd(R_C, P_CR, 640 * 384)
srd(R_D, P_CI, 640 * 384)
srd(R_E, P_LDT, 1280)
srd(R_F, P_DS, 1280)
a(f'''v_lshlrev_b32 v8, 1, v{vLANE}
s_mul_i32 s{sT0}, s{sCH}, 384
s_lshl_b32 s{sT1}, s{sCH}, 1
buffer_load_ushort v{vLDT}, off, s[{R_E}:{R_E+3}], s{sT1}''')
for c in range(3):
    for i, r in enumerate((R_A, R_B, R_C, R_D)):
        a(f'buffer_load_ushort v{PRM+4*c+i}, v8, s[{r}:{r+3}], s{sT0} offen offset:{128*c}')
a(f'buffer_load_ushort v{vDSK}, off, s[{R_F}:{R_F+3}], s{sT1}')
a('s_barrier')
vDT, vXW, vXRA, vXRB = 30, 31, 32, 33
KACC = 36
FA, FB = 52, 84
Z1, W1, W2, Z256, Z512, Z768, Z1024, ZT, ZU = 116, 118, 120, 122, 124, 126, 128, 130, 132
XE, XO, Y0, Y2, Y4, Y6, YC, TM, TN = 134, 136, 138, 140, 142, 144, 146, 148, 150
PK = 152
LOG2E = math.log2(math.e)
L_HI = struct.unpack('<f', struct.pack('<f', LOG2E))[0]
L_LO = LOG2E - L_HI
a(f'''s_mul_i32 s{sU0}, s{sSI}, {AREA}
v_lshl_add_u32 v{vXW}, v{vLANE}, 2, s{sU0}
v_and_b32 v{vT0}, 31, v{vLANE}
v_lshrrev_b32 v{vT1}, 5, v{vLANE}
v_lshlrev_b32 v{vT1}, 4, v{vT1}
v_add_u32 v{vT1}, s{sU0}, v{vT1}
v_mov_b32 v{vT3}, 272
v_mad_u32_u24 v{vXRA}, v{vT0}, v{vT3}, v{vT1}
v_min_u32 v{vT0}, 20, v{vT0}
v_mad_u32_u24 v{vXRB}, v{vT0}, v{vT3}, v{vT1}
s_mov_b32 s{sU1}, {f32(L_HI)}
s_mov_b32 s{sU2}, {f32(L_LO)}
s_mov_b32 s{sU3}, {f32(math.log(2.0))}''')
for i in range(16):
    a(f'v_mov_b32 v{KACC+i}, 0')


def exp_bf16(dst, src, t0, t1):
    a(f'''v_mul_f32 v{t0}, s{sU1}, v{src}
    v_fma_f32 v{t1}, v{src}, s{sU1}, -v{t0}
    v_fmac_f32 v{t1}, s{sU2}, v{src}
    v_exp_f32 v{t0}, v{t0}
    v_mul_f32 v{t1}, s{sU3}, v{t1}
    v_fmac_f32 v{t0}, v{t0}, v{t1}
    v_cvt_pk_bf16_f32 v{dst}, v{t0}, v{t0}
    v_and_b32 v{dst}, 0xffff0000, v{dst}''')


def cmul(d, x, y, t):
    a(f'''v_pk_mul_f32 {v(t,2)}, {v(x,2)}, {v(y,2)} op_sel:[0,0] op_sel_hi:[0,1]
    v_pk_fma_f32 {v(d,2)}, {v(x,2)}, {v(y,2)}, {v(t,2)} op_sel:[1,1,0] op_sel_hi:[1,0,1] neg_lo:[1,0,0]''')


pkn = [0]


def putX(i, x):
    p = PK + (pkn[0] & 3)
    pkn[0] += 1
    a(f'''v_cvt_pk_bf16_f32 v{p}, v{x}, v{x+1}
    ds_write_b32 v{vXW}, v{p} offset:{272*i}''')


def putY(i, y):
    p = PK + (pkn[0] & 3)
    pkn[0] += 1
    a(f'''v_cvt_pk_bf16_f32 v{p}, v{y}, -v{y+1}
    ds_write_b32 v{vXW}, v{p} offset:{272*i}''')


a(f'''s_waitcnt vmcnt(13)
v_lshlrev_b32 v{vLDT}, 16, v{vLDT}''')
exp_bf16(vDT, vLDT, 8, 9)
a(f'''s_mov_b32 s{sLOOP}, 3
s_waitcnt vmcnt(0)''')
stamp(2)
a('L_kg_loop:')
a(f'''v_lshlrev_b32 v8, 16, v{PRM}
v_lshlrev_b32 v9, 16, v{PRM+1}
v_lshlrev_b32 v{Y0}, 16, v{PRM+2}
v_lshlrev_b32 v{Y0+1}, 16, v{PRM+3}''')
for i in range(8):
    a(f'v_mov_b32 v{PRM+i}, v{PRM+4+i}')
exp_bf16(10, 8, 11, 12)
a(f'''v_mul_f32 v10, v10, v{vDT}
v_mul_f32 v9, v9, v{vDT}
v_mul_f32 v10, {f32(-L_HI)}, v10
v_mul_f32 v9, 0.15915494, v9
v_add_f32 v8, v{vDT}, v{vDT}
v_mul_f32 v{Y0}, v{Y0}, v8
v_mul_f32 v{Y0+1}, v{Y0+1}, v8''')
for (dst, p) in ((W1, 8.0), (Z1, 1.0), (Z256, 256.0)):
    if p == 1.0:
        a(f'''v_exp_f32 v11, v10
        v_fract_f32 v12, v9''')
    else:
        a(f'''v_mul_f32 v11, {f32(p)}, v10
        v_mul_f32 v12, {f32(p)}, v9
        v_exp_f32 v11, v11
        v_fract_f32 v12, v12''')
    a(f'''v_cos_f32 v13, v12
    v_sin_f32 v14, v12
    s_nop 0
    v_mul_f32 v{dst}, v11, v13
    v_mul_f32 v{dst+1}, v11, v14''')
a(f'''v_mov_b32 v{PK}, 0x3f80
ds_write_b32 v{vXW}, v{PK}''')
pkn[0] = 1
cmul(W2, W1, W1, TM)
putX(1, W1)
cmul(XO, W1, W2, TN)
putX(2, W2)
cmul(XE, W2, W2, TM)
putX(3, XO)
for i in range(5, 32, 2):
    cmul(XO, XO, W2, TN)
    putX(i - 1, XE)
    if i + 1 < 32:
        cmul(XE, XE, W2, TM)
    putX(i, XO)
for t in range(8):
    a(f'ds_read_b128 {v(FA+4*t,4)}, v{vXRA} offset:{32*t}')
putY(0, Y0)
cmul(YC, Y0, Z1, TM)
cmul(Z512, Z256, Z256, TN)
putY(1, YC)
cmul(Y2, YC, Z1, TM)
cmul(Z768, Z512, Z256, TN)
putY(2, Y2)
cmul(YC, Y2, Z1, TM)
cmul(Z1024, Z512, Z512, TN)
putY(3, YC)
cmul(Y4, YC, Z1, TM)
cmul(ZT, Y0, Z256, TN)
putY(4, Y4)
cmul(YC, Y4, Z1, TM)
putY(8, ZT)
cmul(ZU, Y2, Z256, TN)
putY(5, YC)
cmul(Y6, YC, Z1, TM)
putY(9, ZU)
cmul(ZT, Y4, Z256, TN)
putY(6, Y6)
cmul(YC, Y6, Z1, TM)
putY(10, ZT)
cmul(ZU, Y6, Z256, TN)
putY(7, YC)
cmul(ZT, Y0, Z512, TM)
putY(11, ZU)
cmul(ZU, Y4, Z512, TN)
putY(12, ZT)
cmul(ZT, Y0, Z768, TM)
putY(13, ZU)
cmul(ZU, Y4, Z768, TN)
putY(14, ZT)
cmul(Y2, Y0, Z1024, TM)
putY(15, ZU)
cmul(ZT, Y2, Z256, TN)
putY(16, Y2)
cmul(ZU, Y2, Z512, TM)
putY(17, ZT)
cmul(ZT, Y2, Z768, TN)
putY(18, ZU)
cmul(ZU, Y2, Z1024, TM)
putY(19, ZT)
putY(20, ZU)
for t in range(8):
    a(f'ds_read_b128 {v(FB+4*t,4)}, v{vXRB} offset:{32*t}')
for t in range(8):
    a(f's_waitcnt lgkmcnt({7-t})')
    a(f'v_mfma_f32_32x32x16_bf16 {v(KACC,16)}, {v(FA+4*t,4)}, {v(FB+4*t,4)}, {v(KACC,16)}')
a(f'''s_sub_u32 s{sLOOP}, s{sLOOP}, 1
s_cmp_lg_u32 s{sLOOP}, 0
s_cbranch_scc1 L_kg_loop''')
stamp(3)
a(f'''v_and_b32 v{vT0}, 31, v{vLANE}
v_mul_u32_u24 v{vT0}, 144, v{vT0}
v_lshrrev_b32 v{vT1}, 5, v{vLANE}
v_lshl_add_u32 v{vT0}, v{vT1}, 4, v{vT0}
v_add_u32 v8, s{sU0}, v{vT0}
v_and_b32 v{vT0}, 1, v{vLANE}
v_lshrrev_b32 v{vT1}, 1, v{vLANE}
v_lshlrev_b32 v{vT1}, 2, v{vT1}
v_add_u32 v{vT1}, s{sU0}, v{vT1}
v_mov_b32 v{vT2}, 576
v_mad_u32_u24 v9, v{vT0}, v{vT2}, v{vT1}
v_mov_b32 v{vT2}, 288
v_mad_u32_u24 v10, v{vT0}, v{vT2}, v{vT1}
; seg2: (l>>5)*288 + (l&31)*4
v_lshrrev_b32 v{vT0}, 5, v{vLANE}
v_mul_u32_u24 v{vT0}, 288, v{vT0}
v_and_b32 v{vT1}, 31, v{vLANE}
v_lshl_add_u32 v{vT0}, v{vT1}, 2, v{vT0}
v_add_u32 v11, s{sU0}, v{vT0}
; seg3: (l>>4)*144 + (l&15)*8
v_lshrrev_b32 v{vT0}, 4, v{vLANE}
v_mul_u32_u24 v{vT0}, 144, v{vT0}
v_and_b32 v{vT1}, 15, v{vLANE}
v_lshl_add_u32 v{vT0}, v{vT1}, 3, v{vT0}
v_add_u32 v12, s{sU0}, v{vT0}
v_mov_b32 v13, s{sU0}''')
for q in range(4):
    a(f'ds_write_b128 v8, {v(KACC+4*q,4)} offset:{32*q}')
G = 52
k0, k1, k2, k3, km = G, G + 1, G + 2, G + 3, G + 4
a1, b1, c1, z1 = G + 5, G + 6, G + 7, G + 8
a2, b2, c2 = G + 9, G + 10, G + 11
a3, b3, c3 = G + 12, G + 13, G + 14
for i in range(4):
    a(f'ds_read_b32 v{k0+i}, v9 offset:{144*i}')
a(f'''ds_read_b32 v{a1}, v10 offset:{8*144}
ds_read_b32 v{b1}, v10 offset:{9*144}
ds_read_b32 v{c1}, v13 offset:{12*144}
ds_read_b32 v{z1}, v13 offset:{7*144 + 31*4}
ds_read_b32 v{a2}, v11 offset:{12*144}
ds_read_b32 v{b2}, v11 offset:{13*144}
ds_read_b32 v{c2}, v13 offset:{16*144}
ds_read_b64 {v(a3,2)}, v12 offset:{16*144}
ds_read_b32 v{c3}, v13 offset:{20*144}
v_lshlrev_b32 v{vT0}, 3, v{vLANE}
v_sub_u32 v8, s{sU0}, v{vT0}
v_add_u32 v8, {4*1022}, v8
v_lshlrev_b32 v{vT0}, 4, v{vLANE}
v_sub_u32 v9, s{sU0}, v{vT0}
v_add_u32 v9, {4*764}, v9
v_lshlrev_b32 v{vT0}, 5, v{vLANE}
v_sub_u32 v10, s{sU0}, v{vT0}
v_add_u32 v10, {4*504}, v10
v_add_u32 v11, 4160, v8
v_add_u32 v12, 4160, v9
v_add_u32 v14, 4160, v10
v_subrev_u32 v15, 512, v8
v_subrev_u32 v34, 512, v11
v_lshl_add_u32 v35, v{vLANE}, 2, s{sU0}
s_waitcnt lgkmcnt(0)
v_mov_b32_dpp v{km}, v{k3} wave_shr:1 row_mask:0xf bank_mask:0xf bound_ctrl:0
v_mov_b32_dpp v{c1}, v{a1} wave_shl:1 row_mask:0xf bank_mask:0xf
v_mov_b32_dpp v{c2}, v{a2} wave_shl:1 row_mask:0xf bank_mask:0xf
v_mov_b32_dpp v{c3}, v{a3} wave_shl:1 row_mask:0xf bank_mask:0xf
v_cmp_eq_u32 s[{sM0}:{sM0+1}], 0, v{vLANE}
s_nop 1
v_cndmask_b32 v{z1}, v{a1}, v{z1}, s[{sM0}:{sM0+1}]''')
E = 68


def pk(d, lo, hi):
    a(f'v_cvt_pk_bf16_f32 v{d}, v{lo}, v{hi}')


pk(E, k3, k2); pk(E + 1, k1, k0); pk(E + 2, k2, k1); pk(E + 3, k0, km)
a(f'''ds_write_b64 v8, {v(E,2)}
ds_write_b64 v11, {v(E+2,2)}''')
pk(E + 4, c1, b1); pk(E + 5, a1, a1); pk(E + 6, b1, a1); pk(E + 7, a1, z1)
a(f'''ds_write_b64 v15, {v(E+4,2)}
ds_write_b64 v34, {v(E+6,2)}''')
pk(E + 8, c2, c2); pk(E + 9, b2, b2); pk(E + 10, b2, a2); pk(E + 11, a2, a2)
pk(E + 12, c2, b2)
a(f'''v_mov_b32 v{E+13}, v{E+9}
v_mov_b32 v{E+14}, v{E+11}
v_mov_b32 v{E+15}, v{E+11}
ds_write_b128 v9, {v(E+8,4)}
ds_write_b128 v12, {v(E+12,4)}''')
F = E + 16
pk(F, c3, c3); pk(F + 2, b3, b3); pk(F + 5, b3, a3); pk(F + 6, a3, a3); pk(F + 9, c3, b3)
a(f'''v_mov_b32 v{F+1}, v{F}
v_mov_b32 v{F+3}, v{F+2}
v_mov_b32 v{F+4}, v{F+2}
v_mov_b32 v{F+7}, v{F+6}
v_mov_b32 v{F+8}, v{F}
v_mov_b32 v{F+10}, v{F+2}
v_mov_b32 v{F+11}, v{F+2}
v_mov_b32 v{F+12}, v{F+2}
v_mov_b32 v{F+13}, v{F+6}
v_mov_b32 v{F+14}, v{F+6}
v_mov_b32 v{F+15}, v{F+6}
ds_write_b128 v10, {v(F,4)}
ds_write_b128 v10, {v(F+4,4)} offset:16
ds_write_b128 v14, {v(F+8,4)}
ds_write_b128 v14, {v(F+12,4)} offset:16
v_mov_b32 v{vT0}, 0
s_mov_b64 exec, 0xffff
ds_write_b32 v35, v{vT0} offset:4096
ds_write_b32 v35, v{vT0} offset:{4096+4160}
s_mov_b64 exec, -1''')
vCA0, vCA1, vCB, vUE = 30, 31, 32, 33
a(f'''; A: area + copy*4160 + 4*(1023 - rho + 4 hi - 240) ; copy = 1 for even rows
v_bfe_u32 v{vT0}, v{vLANE}, 1, 4
v_lshrrev_b32 v{vT1}, 5, v{vLANE}
v_lshlrev_b32 v{vT1}, 2, v{vT1}
v_sub_u32 v{vT0}, v{vT1}, v{vT0}
v_add_u32 v{vT0}, 783, v{vT0}
v_lshlrev_b32 v{vT0}, 2, v{vT0}
v_and_b32 v{vT1}, 1, v{vLANE}
v_xor_b32 v{vT1}, 1, v{vT1}
v_mul_u32_u24 v{vT1}, 4160, v{vT1}
v_add3_u32 v{vCA0}, v{vT0}, v{vT1}, s{sU0}
v_subrev_u32 v{vCA1}, 2048, v{vCA0}
s_mul_i32 s{sU1}, s{sSI}, {UTA}
s_add_u32 s{sU1}, s{sU1}, {L_UTA}
v_and_b32 v{vT0}, 31, v{vLANE}
v_mul_u32_u24 v{vT0}, 80, v{vT0}
v_lshrrev_b32 v{vT1}, 5, v{vLANE}
v_lshl_add_u32 v{vT2}, v{vT1}, 4, v{vT0}
v_add_u32 v{vT2}, 80, v{vT2}
v_add_u32 v{vCB}, s{sU1}, v{vT2}
v_lshl_add_u32 v{vT2}, v{vT1}, 3, v{vT0}
v_add_u32 v{vT2}, 2560, v{vT2}
v_add_u32 v{vUE}, s{sU1}, v{vT2}
s_waitcnt lgkmcnt(0)''')
stamp(5)
a('s_barrier')
a('s_setprio 3')
a(f'''ds_read_b32 v8, v{vMISC} offset:{M_NONCE}
v_lshl_add_u32 v9, v{vLANE}, 4, s{sU1}
v_mov_b32 v36, 0
v_mov_b32 v37, 0
v_mov_b32 v38, 0
v_mov_b32 v39, 0
ds_write_b128 v9, v[36:39]
ds_write_b128 v9, v[36:39] offset:1024
ds_write_b128 v9, v[36:39] offset:2048
v_and_b32 v10, 31, v{vLANE}
v_lshlrev_b32 v10, 10, v10
s_lshl_b32 s{sT1}, s{sXCD}, 7
s_add_u32 s{sT1}, s{sT1}, {WS_FU}
s_waitcnt lgkmcnt(0)
v_readfirstlane_b32 s{sNON}, v8
s_mov_b32 s{sSPIN}, {SPIN}
L_pu:
buffer_load_dword v11, v10, s[{R_WS}:{R_WS+3}], s{sT1} offen sc1
s_waitcnt vmcnt(0)
v_cmp_ne_u32 vcc, s{sNON}, v11
s_cbranch_vccz L_pu_go
s_sub_u32 s{sSPIN}, s{sSPIN}, 1
s_cmp_lg_u32 s{sSPIN}, 0
s_cbranch_scc1 L_pu
L_pu_go:
s_lshl_b32 s{sT0}, s{sCH}, 12
s_add_u32 s{sT0}, s{sT0}, {WS_UT}''')
for j in range(5):
    a(f'''v_add_u32 v{vT0}, {64*j}, v{vLANE}
    v_mul_u32_u24 v{vT1}, 13108, v{vT0}
    v_lshrrev_b32 v{vT1}, 16, v{vT1}
    v_mul_u32_u24 v{vT2}, 5, v{vT1}
    v_sub_u32 v{vT0}, v{vT0}, v{vT2}
    v_min_u32 v{vT0}, 3, v{vT0}
    v_lshlrev_b32 v{vT1}, 6, v{vT1}
    v_lshl_add_u32 v{36+j}, v{vT0}, 4, v{vT1}
    s_add_u32 m0, s{sU1}, {2560 + 1024*j}
    s_nop 0
    buffer_load_dwordx4 v{36+j}, s[{R_WS}:{R_WS+3}], s{sT0} offen sc1 lds''')
N0, N1 = 36, 52
CF = 68
a('s_waitcnt vmcnt(0)')
for i in range(32):
    a(f'v_mov_b32 v{N0+i}, 0')
stamp(6)


def conv_reads(k):
    t, h = k >> 1, k & 1
    d = CF + 16 * (k & 1)
    off = 16 * (15 - (t & 15)) + 8 * h
    L = []
    if t == 16 and h == 0:
        L += [f'v_subrev_u32 v{vCA0}, 1024, v{vCA0}', f'v_subrev_u32 v{vCA1}, 1024, v{vCA1}']
    L += [f'ds_read2_b32 {v(d,2)}, v{vCA0} offset0:{off} offset1:{off+1}',
          f'ds_read2_b32 {v(d+2,2)}, v{vCA0} offset0:{off+2} offset1:{off+3}',
          f'ds_read_b128 {v(d+12,4)}, v{vCB} offset:{(31-t)*80 + 32*h + 2560}',
          f'ds_read_b128 {v(d+8,4)}, v{vCB} offset:{(31-t)*80 + 32*h}',
          f'ds_read2_b32 {v(d+4,2)}, v{vCA1} offset0:{off} offset1:{off+1}',
          f'ds_read2_b32 {v(d+6,2)}, v{vCA1} offset0:{off+2} offset1:{off+3}']
    return L


for x in conv_reads(0):
    a(x)
a('s_barrier')
cuts = [13, 26, 39, 52, 64]
k = 0
for n in range(5):
    while k < cuts[n]:
        d = CF + 16 * (k & 1)
        e = CF + 16 * ((k + 1) & 1)
        nx = conv_reads(k + 1) if k + 1 < 64 else []
        a('s_waitcnt lgkmcnt(0)')
        a(f'v_mfma_f32_32x32x16_bf16 {v(N1,16)}, {v(d,4)}, {v(d+12,4)}, {v(N1,16)}')
        for x in nx[:-3]:
            a(x)
        a(f'v_mfma_f32_32x32x16_bf16 {v(N0,16)}, {v(d,4)}, {v(d+8,4)}, {v(N0,16)}')
        for x in nx[-3:]:
            a(x)
        a(f'v_mfma_f32_32x32x16_bf16 {v(N1,16)}, {v(d+4,4)}, {v(d+8,4)}, {v(N1,16)}')
        k += 1
    a('s_barrier')
stamp(7)
a(f'v_lshlrev_b32 v{vDSK}, 16, v{vDSK}')
for b in range(2):
    for q in range(4):
        a(f'ds_read_b64 {v(CF+8*b+2*q,2)}, v{vUE} offset:{2560*b + 16*q}')
for b in range(2):
    N = (N0, N1)[b]
    for q in range(4):
        u = CF + 8 * b + 2 * q
        a(f's_waitcnt lgkmcnt({7 - 4*b - q})')
        a(f'''v_lshlrev_b32 v8, 16, v{u}
        v_and_b32 v9, 0xffff0000, v{u}
        v_lshlrev_b32 v10, 16, v{u+1}
        v_and_b32 v11, 0xffff0000, v{u+1}
        v_fmac_f32 v{N+4*q}, v8, v{vDSK}
        v_fmac_f32 v{N+4*q+1}, v9, v{vDSK}
        v_fmac_f32 v{N+4*q+2}, v10, v{vDSK}
        v_fmac_f32 v{N+4*q+3}, v11, v{vDSK}
        v_cvt_pk_bf16_f32 v{u}, v{N+4*q}, v{N+4*q+1}
        v_cvt_pk_bf16_f32 v{u+1}, v{N+4*q+2}, v{N+4*q+3}''')
for b in range(2):
    for q in range(4):
        a(f'ds_write_b64 v{vUE}, {v(CF+8*b+2*q,2)} offset:{2560*b + 16*q}')
a(f'''; read back: lane -> block (l>>2) + 16 jj, part l&3
v_lshrrev_b32 v{vT0}, 2, v{vLANE}
v_mul_u32_u24 v{vT0}, 80, v{vT0}
v_and_b32 v{vT1}, 3, v{vLANE}
v_lshl_add_u32 v{vT0}, v{vT1}, 4, v{vT0}
v_add_u32 v8, s{sU1}, v{vT0}
v_lshrrev_b32 v{vT0}, 3, v{vLANE}
v_mov_b32 v{vT2}, 81920
v_mul_lo_u32 v{vT0}, v{vT0}, v{vT2}
v_and_b32 v{vT1}, 7, v{vLANE}
v_lshl_add_u32 v9, v{vT1}, 4, v{vT0}
s_lshl_b32 s{sT0}, s{sCH}, 7
s_add_u32 s{sT0}, s{sT0}, {WS_YT}''')
for jj in range(4):
    a(f'ds_read_b128 {v(N0+4*jj,4)}, v8 offset:{2560 + 1280*jj}')
for jj in range(4):
    a(f'''s_waitcnt lgkmcnt({3-jj})
    buffer_store_dwordx4 {v(N0+4*jj,4)}, v9, s[{R_WS}:{R_WS+3}], s{sT0} offen sc1
    s_add_u32 s{sT0}, s{sT0}, {8*81920}''')
a('''s_waitcnt vmcnt(0)
s_barrier
s_barrier''')

a('L_yout:')
stamp(8)
srd(R_B, P_OUT, 2048 * 2560)
a(f'''ds_read_b32 v8, v{vMISC} offset:{M_NONCE}
v_and_b32 v10, 31, v{vLANE}
v_lshlrev_b32 v10, 10, v10
s_lshl_b32 s{sT1}, s{sG}, 7
s_add_u32 s{sT1}, s{sT1}, {WS_FY}
s_mul_i32 s{sU0}, s{sSI}, 3072
s_add_u32 s{sU0}, s{sU0}, {L_YS}
s_mul_i32 s{sT0}, s{sRHO}, 81920
s_mul_i32 s{sT2}, s{sG}, 10240
s_add_u32 s{sT0}, s{sT0}, s{sT2}
s_lshl_b32 s{sT2}, s{sSI}, 5
s_add_u32 s{sT0}, s{sT0}, s{sT2}
s_add_u32 s{sU1}, s{sT0}, {WS_YT}''')
for j in range(3):
    a(f'''v_add_u32 v{vT0}, {64*j}, v{vLANE}
    v_min_u32 v{vT0}, 159, v{vT0}
    v_lshrrev_b32 v{vT1}, 1, v{vT0}
    v_lshlrev_b32 v{vT1}, 7, v{vT1}
    v_and_b32 v{vT0}, 1, v{vT0}
    v_lshl_add_u32 v{16+j}, v{vT0}, 4, v{vT1}''')
a(f'''; tr-read address: priv + (8 o + r)*32 + 8 c, o = 4 b + kq (clamped to 9)
v_lshrrev_b32 v{vT0}, 4, v{vLANE}
v_bfe_u32 v{vT1}, v{vLANE}, 2, 2
v_and_b32 v{vT2}, 3, v{vLANE}
v_lshlrev_b32 v{vT2}, 3, v{vT2}
v_lshl_add_u32 v{vT2}, v{vT1}, 5, v{vT2}
v_add_u32 v{vT2}, s{sU0}, v{vT2}
v_lshl_add_u32 v20, v{vT0}, 8, v{vT2}
v_and_b32 v{vT3}, 1, v{vT0}
v_lshl_add_u32 v21, v{vT3}, 8, v{vT2}
v_and_b32 v{vT1}, 15, v{vLANE}
v_mul_u32_u24 v{vT1}, 2560, v{vT1}
v_lshl_add_u32 v22, v{vT0}, 4, v{vT1}
s_lshl_b32 s{sT0}, s{sRHO}, 6
s_lshl_b32 s{sT2}, s{sSI}, 4
s_add_u32 s{sT0}, s{sT0}, s{sT2}
s_mul_i32 s{sT0}, s{sT0}, 2560
s_mul_i32 s{sT2}, s{sG}, 160
s_add_u32 s{sT0}, s{sT0}, s{sT2}
s_add_u32 s{sU2}, s{sT0}, 1280
s_waitcnt lgkmcnt(0)
v_readfirstlane_b32 s{sNON}, v8
s_mov_b32 s{sSPIN}, {SPIN}
L_py:
buffer_load_dword v11, v10, s[{R_WS}:{R_WS+3}], s{sT1} offen sc1
s_waitcnt vmcnt(0)
v_cmp_ne_u32 vcc, s{sNON}, v11
s_cbranch_vccz L_py_go
s_sub_u32 s{sSPIN}, s{sSPIN}, 1
s_cmp_lg_u32 s{sSPIN}, 0
s_cbranch_scc1 L_py
L_py_go:''')
for j in range(3):
    a(f'''s_add_u32 m0, s{sU0}, {1024*j}
    s_nop 0
    buffer_load_dwordx4 v{16+j}, s[{R_WS}:{R_WS+3}], s{sU1} offen sc1 lds''')
a('s_waitcnt vmcnt(0)')
for b in range(3):
    r, o = (20, 1024 * b) if b < 2 else (21, 2048)
    a(f'''ds_read_b64_tr_b16 {v(24+4*b,2)}, v{r} offset:{o}
    ds_read_b64_tr_b16 {v(26+4*b,2)}, v{r} offset:{o+128}''')
a(f'''s_waitcnt lgkmcnt(0)
buffer_store_dwordx4 v[24:27], v22, s[{R_B}:{R_B+3}], s{sU2} offen
buffer_store_dwordx4 v[28:31], v22, s[{R_B}:{R_B+3}], s{sU2} offen offset:64
s_mov_b32 exec_hi, 0
buffer_store_dwordx4 v[32:35], v22, s[{R_B}:{R_B+3}], s{sU2} offen offset:128
s_mov_b64 exec, -1''')
if STAMPS:
    a('s_waitcnt vmcnt(0)')
stamp(9)
a('L_exit:\ns_endpgm')

lines, nins = hazard_pass(a.lines, verbose='-v' in sys.argv)
ref = open('cdna_kernels/%s.s.ref' % NAME).read().split('\n')
head = []
for l in ref:
    if l.startswith('; @launch'):
        break
    head.append(l)
txt = '\n'.join(head) + f'''
; @launch grid=(256,1,1) block=(768,1,1) lds={LDS_BYTES}
.amdgcn_target "amdgcn-amd-amdhsa--gfx950"
.text
.globl {NAME}_kernel
.p2align 8
.type {NAME}_kernel,@function
{NAME}_kernel:
''' + '\n'.join(lines) + f'''
.section .rodata,"a"
.p2align 6
.amdhsa_kernel {NAME}_kernel
  .amdhsa_next_free_vgpr 168
  .amdhsa_next_free_sgpr 96
  .amdhsa_accum_offset 168
  .amdhsa_group_segment_fixed_size 0
  .amdhsa_kernarg_size 120
  .amdhsa_user_sgpr_count 2
  .amdhsa_user_sgpr_kernarg_segment_ptr 1
  .amdhsa_system_sgpr_workgroup_id_x 1
  .amdhsa_float_denorm_mode_32 3
.end_amdhsa_kernel
'''
out = [x for x in sys.argv[1:] if not x.startswith('-')]
path = out[0] if out else 'cdna_kernels/%s.s' % NAME
open(path, 'w').write(txt)
print('wrote', path, len(lines), 'lines; hazard nops inserted:', nins)
```

```python
import sys, struct, math
sys.path.insert(0, 'work')
from asmlib import Asm, hazard_pass, v, s

NAME = 'concat_heads__grouped_kv_mqa__ssm_conv_s4d__prompt'
STAMPS = '--stamps' in sys.argv
FORCE_SLOW = '--slow' in sys.argv


def f32(x):
    return '0x%08x' % struct.unpack('<I', struct.pack('<f', x))[0]


WS_Z = 0
WS_FKV = 4096
WS_FU = WS_FKV + 256 * 128
WS_FY = WS_FU + 256 * 128
WS_FO = 131072
WS_KVT = 0x80000
WS_UT = 0x100000
WS_YT = 0x400000
WS_OX = 0x700000
WS_ST = 0xA00000
WS_BYTES = 0x1000000
TILE = 2624
GROUP = 8 * TILE
NONCE_K = 0x9E3779B9

L_A = 0
AREA = 8704
L_WKV = 17408
L_SL0 = 26112
L_SCR = 43008
L_MISC = 59392
L_WQ = 61440
L_SL1 = 61440
L_QP = 61440
L_UTA = 82944
UTA = 7680
L_YS = 93184
LDS_BYTES = 163840
SLOTD = L_SL1 - L_SL0
WO_UNIT = [105984 + 5120 * i for i in range(11)] + [47616, 52736] + [5120 * i for i in range(5)] + [82944, 88064]
L_EX1 = L_SL0
M_W, M_D, M_E, M_F, M_X = 0, 4, 8, 12, 16
M_PKV = 20
M_KMAX, M_VMAX, M_NONCE = 40, 44, 36
M_PE1 = 64
M_PE2 = 96
SPIN = 400000

P_X, P_WQ, P_WK, P_WV, P_WO, P_U, P_LA, P_AI = 16, 18, 20, 22, 24, 26, 28, 30
P_CR, P_CI, P_LDT, P_DS, P_OUT, P_DBG, P_WS = 32, 34, 36, 38, 40, 42, 44
sW, sRHO, sG, sXCD, sNON = 3, 4, 5, 6, 7
sT0, sT1, sT2, sT3, sT4, sT5, sT6, sT7 = 8, 9, 10, 11, 12, 13, 14, 15
R_WS = 48
R_A, R_B, R_C, R_D, R_E, R_F = 52, 56, 60, 64, 68, 72
sRT, sKH, sSLOT, sRANK, sCH, sSI, sSPIN, sLOOP = 76, 77, 78, 79, 80, 81, 82, 83
sM0, sM1 = 84, 86
sU0, sU1, sU2, sU3, sU4, sU5 = 88, 89, 90, 91, 92, 93
sSTAMP = 94

a = Asm()


def srd(dst, ptr, nbytes):
    a(f'''s_mov_b32 s{dst}, s{ptr}
    s_mov_b32 s{dst+1}, s{ptr+1}
    s_mov_b32 s{dst+2}, {nbytes}
    s_mov_b32 s{dst+3}, 0x20000''')


vLANE, vMISC, vONE, vT0, vT1, vT2, vT3 = 1, 2, 3, 4, 5, 6, 7


def arrive(word, val_reg=vONE):
    a(f'''s_mov_b64 exec, 1
    ds_add_u32 v{vMISC}, v{val_reg} offset:{word}
    s_mov_b64 exec, -1''')


def lds_wait(word, target, tmp=vT0):
    L = a.label('w')
    D = a.label('wd')
    a(f'''s_mov_b32 s{sSPIN}, {SPIN}
    {L}:
    ds_read_b32 v{tmp}, v{vMISC} offset:{word}
    s_waitcnt lgkmcnt(0)
    v_readfirstlane_b32 s{sT7}, v{tmp}
    s_cmp_ge_u32 s{sT7}, {target}
    s_cbranch_scc1 {D}
    s_sub_u32 s{sSPIN}, s{sSPIN}, 1
    s_cmp_lg_u32 s{sSPIN}, 0
    s_cbranch_scc1 {L}
    {D}:''')


def lds_wait_v(vaddr, target, tmp=vT0):
    L = a.label('w')
    D = a.label('wd')
    a(f'''s_mov_b32 s{sSPIN}, {SPIN}
    {L}:
    ds_read_b32 v{tmp}, v{vaddr}
    s_waitcnt lgkmcnt(0)
    v_readfirstlane_b32 s{sT7}, v{tmp}
    s_cmp_ge_u32 s{sT7}, {target}
    s_cbranch_scc1 {D}
    s_sub_u32 s{sSPIN}, s{sSPIN}, 1
    s_cmp_lg_u32 s{sSPIN}, 0
    s_cbranch_scc1 {L}
    {D}:''')


def stamp(idx):
    if not STAMPS:
        return
    a(f'''s_memrealtime s[{sSTAMP}:{sSTAMP+1}]
    s_memtime s[96:97]
    s_mul_i32 s{sT7}, s2, 12
    s_add_u32 s{sT7}, s{sT7}, s{sW}
    s_lshl_b32 s{sT7}, s{sT7}, 7
    s_add_u32 s{sT7}, s{sT7}, {WS_ST + idx*8}
    s_waitcnt lgkmcnt(0)
    v_mov_b32 v166, s{sSTAMP}
    v_mov_b32 v167, s96
    s_mov_b64 exec, 1
    buffer_store_dwordx2 v[166:167], off, s[{R_WS}:{R_WS+3}], s{sT7}
    s_mov_b64 exec, -1''')


def div10(dst_q, dst_r, src, tmp):
    a(f'''v_mul_u32_u24 v{dst_q}, 6554, v{src}
    v_lshrrev_b32 v{dst_q}, 16, v{dst_q}
    v_mul_u32_u24 v{tmp}, 10, v{dst_q}
    v_sub_u32 v{dst_r}, v{src}, v{tmp}''')


def pattern_regs(dst, kind):
    for j in range(5):
        a(f'v_add_u32 v{vT0}, {64*j}, v{vLANE}')
        div10(vT1, vT2, vT0, vT3)
        if kind == 'swap':
            a(f'''v_and_b32 v{vT3}, 0x13, v{vT1}
            v_bfe_u32 v{vT0}, v{vT1}, 2, 1
            v_lshl_or_b32 v{vT3}, v{vT0}, 3, v{vT3}
            v_bfe_u32 v{vT0}, v{vT1}, 3, 1
            v_lshl_or_b32 v{vT1}, v{vT0}, 2, v{vT3}''')
        elif kind == 'won':
            a(f'''v_lshrrev_b32 v{vT0}, 4, v{vT1}
            v_lshl_add_u32 v{vT1}, v{vT0}, 2, v{vT1}''')
        elif kind == 'wol':
            a(f'''v_lshrrev_b32 v{vT0}, 2, v{vT1}
            v_mul_u32_u24 v{vT0}, 20, v{vT0}
            v_and_b32 v{vT1}, 3, v{vT1}
            v_add3_u32 v{vT1}, v{vT0}, v{vT1}, 16''')
        a(f'''v_mul_u32_u24 v{vT1}, 1280, v{vT1}
        v_lshl_add_u32 v{dst+j}, v{vT2}, 4, v{vT1}''')


def gemm_lanepart(dst):
    a(f'''v_bfe_u32 v{vT0}, v{vLANE}, 5, 1
    v_lshlrev_b32 v{vT0}, 4, v{vT0}
    v_bfe_u32 v{vT1}, v{vLANE}, 4, 1
    v_lshl_add_u32 v{vT0}, v{vT1}, 2, v{vT0}
    v_bfe_u32 v{vT1}, v{vLANE}, 2, 2
    v_add_u32 v{vT0}, v{vT0}, v{vT1}
    v_mul_u32_u24 v{vT0}, 160, v{vT0}
    v_and_b32 v{vT1}, 3, v{vLANE}
    v_lshl_add_u32 v{dst}, v{vT1}, 3, v{vT0}''')


def gemm(xf, acc, ab, addr, waits=None):
    def reads(i, ct):
        r, base = addr(i)
        d = ab + 20 * (i & 1) + 4 * ct
        return [f'ds_read_b64_tr_b16 v[{d}:{d+1}], v{r} offset:{base + 32*ct}',
                f'ds_read_b64_tr_b16 v[{d+2}:{d+3}], v{r} offset:{base + 1280 + 32*ct}']
    for ct in range(5):
        for x in reads(0, ct):
            a(x)
    for i in range(10):
        if waits and i in waits:
            a(waits[i])
        for ct in range(5):
            n = 8 if i < 9 else 8 - 2 * ct
            a(f's_waitcnt lgkmcnt({n})')
            A = ab + 20 * (i & 1) + 4 * ct
            C = '0' if i == 0 else v(acc + 4 * ct, 4)
            a(f'v_mfma_f32_16x16x32_bf16 {v(acc+4*ct,4)}, {v(A,4)}, {v(xf+4*i,4)}, {C}')
            if i < 9:
                for x in reads(i + 1, ct):
                    a(x)


a(f'''s_cmp_ge_u32 s2, 256
s_cbranch_scc1 L_exit
s_load_dwordx16 s[16:31], s[0:1], 0
s_load_dwordx8 s[32:39], s[0:1], 64
s_load_dwordx4 s[40:43], s[0:1], 96
s_load_dwordx2 s[44:45], s[0:1], 112
v_lshrrev_b32 v{vT0}, 6, v0
v_and_b32 v{vLANE}, 63, v0
v_readfirstlane_b32 s{sW}, v{vT0}
s_and_b32 s{sXCD}, s2, 7
s_lshr_b32 s{sT0}, s2, 3
s_and_b32 s{sG}, s{sT0}, 7
s_lshr_b32 s{sT0}, s{sT0}, 3
s_lshl_b32 s{sRHO}, s{sXCD}, 2
s_add_u32 s{sRHO}, s{sRHO}, s{sT0}
v_mov_b32 v{vMISC}, {L_MISC}
v_mov_b32 v{vONE}, 1
v_mov_b32 v{vT1}, 0
v_lshl_add_u32 v{vT0}, v{vLANE}, 2, v{vMISC}
s_cmp_lg_u32 s{sW}, 0
s_cbranch_scc1 L_noinit
ds_write_b32 v{vT0}, v{vT1}
L_noinit:
s_waitcnt lgkmcnt(0)''')
srd(R_WS, P_WS, WS_BYTES)
stamp(0)
a(f'''s_cmp_ge_u32 s{sW}, 8
s_cbranch_scc1 L_S''')

XF = 16
ACC = 56
AB = 80
vXA0, vXA1 = 120, 121
vXR0, vXR1 = 122, 123
vPAT = 124
vGA = 129
vZ = 131
vKVA = 132

srd(R_A, P_X, 2048 * 1280)
a(f'''buffer_load_dword v{vZ}, off, s[{R_WS}:{R_WS+3}], 0 sc1
s_and_b32 s{sRT}, s{sW}, 3
s_lshr_b32 s{sKH}, s{sW}, 2
s_and_b32 s{sT0}, s{sRT}, 1
s_lshl_b32 s{sT1}, s{sKH}, 1
s_add_u32 s{sRANK}, s{sT0}, s{sT1}
v_lshrrev_b32 v{vT0}, 3, v{vLANE}
v_and_b32 v{vT1}, 7, v{vLANE}
v_mul_u32_u24 v{vT2}, 1280, v{vT0}
v_lshl_add_u32 v{vXA0}, v{vT1}, 4, v{vT2}
s_lshl_b32 s{sU0}, s{sRHO}, 6
s_lshl_b32 s{sT0}, s{sRT}, 4
s_add_u32 s{sU0}, s{sU0}, s{sT0}
s_mul_i32 s{sU0}, s{sU0}, 1280
s_mul_i32 s{sT0}, s{sKH}, 640
s_add_u32 s{sU0}, s{sU0}, s{sT0}
s_add_u32 s{sU1}, s{sU0}, 10240
s_lshr_b32 s{sT0}, s{sRT}, 1
s_bfe_u32 s{sT1}, s{sG}, 0x10001
s_cmp_eq_u32 s{sT0}, s{sT1}
s_cselect_b32 s{sT2}, 4, 0
s_add_u32 s{sSLOT}, s{sRANK}, s{sT2}''')


def x_loads():
    for i2 in range(5):
        a(f'buffer_load_dwordx4 {v(XF+8*i2,4)}, v{vXA0}, s[{R_A}:{R_A+3}], s{sU0} offen offset:{128*i2}')
        a(f'buffer_load_dwordx4 {v(XF+8*i2+4,4)}, v{vXA0}, s[{R_A}:{R_A+3}], s{sU1} offen offset:{128*i2}')


def x_scratch_addrs():
    a(f'''s_add_u32 s{sT0}, s{sSLOT}, 2
    s_and_b32 s{sT0}, s{sT0}, 7
    s_lshl_b32 s{sT0}, s{sT0}, 11
    s_add_u32 s{sT0}, s{sT0}, {L_SCR}
    v_lshrrev_b32 v{vT0}, 3, v{vLANE}
    v_and_b32 v{vT1}, 7, v{vLANE}
    v_lshrrev_b32 v{vT2}, 4, v{vLANE}
    v_xor_b32 v{vT1}, v{vT1}, v{vT2}
    v_lshlrev_b32 v{vT0}, 7, v{vT0}
    v_lshl_add_u32 v{vT0}, v{vT1}, 4, v{vT0}
    v_add_u32 v{vXA0}, s{sT0}, v{vT0}
    v_xor_b32 v{vXA1}, 64, v{vXA0}
    v_and_b32 v{vT0}, 15, v{vLANE}
    v_bfe_u32 v{vT1}, v{vLANE}, 1, 3
    v_xor_b32 v{vT1}, v{vT1}, v{vT2}
    v_lshlrev_b32 v{vT0}, 7, v{vT0}
    v_lshl_add_u32 v{vT0}, v{vT1}, 4, v{vT0}
    v_add_u32 v{vXR0}, s{sT0}, v{vT0}
    v_xor_b32 v{vXR1}, 64, v{vXR0}''')


def x_transpose(extra):
    for i2 in range(5):
        a(f's_waitcnt vmcnt({extra + 8 - 2*i2})')
        a(f'''ds_write_b128 v{vXA0}, {v(XF+8*i2,4)}
        ds_write_b128 v{vXA1}, {v(XF+8*i2+4,4)} offset:1024
        ds_read_b128 {v(XF+8*i2,4)}, v{vXR0}
        ds_read_b128 {v(XF+8*i2+4,4)}, v{vXR1}''')
    a(f'''v_readfirstlane_b32 s{sNON}, v{vZ}
    s_add_u32 s{sNON}, s{sNON}, {NONCE_K}
    s_waitcnt lgkmcnt(0)''')
    arrive(M_X)


a(f'''s_cmp_eq_u32 s{sT2}, 0
s_cbranch_scc1 L_A_duty''')
x_loads()
a(f'''s_cmp_ge_u32 s{sG}, 4
s_cbranch_scc1 L_A_rb''')
a(f'''s_and_b32 s{sT0}, s{sG}, 1
s_cmp_eq_u32 s{sT0}, 0
s_cselect_b32 s{R_B}, s{P_WK}, s{P_WV}
s_cselect_b32 s{R_B+1}, s{P_WK+1}, s{P_WV+1}
s_mov_b32 s{R_B+2}, 25600
s_mov_b32 s{R_B+3}, 0x20000
v_lshlrev_b32 v{vT0}, 4, v{vLANE}''')
for i in range(7):
    a(f'''s_add_u32 s{sT0}, s{sRANK}, {4*i}
    s_min_u32 s{sT0}, s{sT0}, 24
    s_lshl_b32 s{sT0}, s{sT0}, 10
    s_add_u32 m0, s{sT0}, {L_WKV}
    s_nop 0
    buffer_load_dwordx4 v{vT0}, s[{R_B}:{R_B+3}], s{sT0} offen lds''')
x_scratch_addrs()
a('s_barrier')
stamp(1)
x_transpose(7 + (1 if STAMPS else 0))
a('s_waitcnt vmcnt(0)')
arrive(M_W)
a(f'''v_lshrrev_b32 v{vT0}, 4, v{vLANE}
v_bfe_u32 v{vT1}, v{vLANE}, 2, 2
v_lshl_add_u32 v{vT0}, v{vT0}, 3, v{vT1}
v_mul_u32_u24 v{vT0}, 40, v{vT0}
v_and_b32 v{vT1}, 3, v{vLANE}
v_lshl_add_u32 v{vT0}, v{vT1}, 3, v{vT0}
s_mul_i32 s{sT0}, s{sKH}, 12800
s_add_u32 s{sT0}, s{sT0}, {L_WKV}
v_add_u32 v{vKVA}, s{sT0}, v{vT0}''')
lds_wait(M_W, 4)
stamp(2)


def kv_mfmas(isv):
    def reads(i):
        d = AB + 8 * (i % 3)
        return [f'ds_read_b64_tr_b16 v[{d+4*ct+2*e}:{d+4*ct+2*e+1}], v{vKVA} offset:{1280*i + 160*e + 32*ct}'
                for ct in range(2) for e in range(2)]
    for x in reads(0) + reads(1):
        a(x)
    for i in range(10):
        a(f's_waitcnt lgkmcnt({4 if i < 9 else 0})')
        d = AB + 8 * (i % 3)
        for ct in range(2):
            C = '0' if i == 0 else v(ACC + 4 * ct, 4)
            W, X = v(d + 4 * ct, 4), v(XF + 4 * i, 4)
            a(f'v_mfma_f32_16x16x32_bf16 {v(ACC+4*ct,4)}, {X if isv else W}, {W if isv else X}, {C}')
        if i + 2 < 10:
            for x in reads(i + 2):
                a(x)


a(f'''s_and_b32 s{sT0}, s{sG}, 1
s_cmp_eq_u32 s{sT0}, 1
s_cbranch_scc1 L_kv_v''')
kv_mfmas(False)
a('s_branch L_kv_red\nL_kv_v:')
kv_mfmas(True)
a('L_kv_red:')
a(f'''s_and_b32 s{sT0}, s{sRT}, 1
s_lshl_b32 s{sT0}, s{sT0}, 11
s_add_u32 s{sT0}, s{sT0}, {L_SCR}
v_lshl_add_u32 v{vT2}, v{vLANE}, 4, s{sT0}
s_lshl_b32 s{sT0}, s{sRT}, 2
s_add_u32 s{sT0}, s{sT0}, {L_MISC + M_PKV}
v_mov_b32 v{vT3}, s{sT0}
s_cmp_eq_u32 s{sKH}, 0
s_cbranch_scc1 L_kv_fin
ds_write_b128 v{vT2}, {v(ACC,4)}
ds_write_b128 v{vT2}, {v(ACC+4,4)} offset:1024
s_waitcnt lgkmcnt(0)
s_mov_b64 exec, 1
ds_write_b32 v{vT3}, v{vONE}
s_mov_b64 exec, -1
s_branch L_A_q
L_kv_fin:''')
lds_wait_v(vT3, 1)
K0 = AB
a(f'''ds_read_b128 {v(K0,4)}, v{vT2}
ds_read_b128 {v(K0+4,4)}, v{vT2} offset:1024
s_lshl_b32 s{sT0}, s{sRHO}, 1
s_lshr_b32 s{sT1}, s{sG}, 1
s_add_u32 s{sT0}, s{sT0}, s{sT1}
s_mul_i32 s{sU2}, s{sT0}, {TILE}
s_add_u32 s{sU2}, s{sU2}, {WS_KVT}
s_lshl_b32 s{sT0}, s{sT0}, 1
s_and_b32 s{sT1}, s{sRT}, 1
s_add_u32 s{sT0}, s{sT0}, s{sT1}
s_lshl_b32 s{sT0}, s{sT0}, 1
s_and_b32 s{sT2}, s{sG}, 1
s_add_u32 s{sT0}, s{sT0}, s{sT2}
s_lshl_b32 s{sU3}, s{sT0}, 7
s_add_u32 s{sU3}, s{sU3}, {WS_FKV}
v_and_b32 v8, 15, v{vLANE}
v_lshrrev_b32 v9, 4, v{vLANE}
s_waitcnt lgkmcnt(0)''')
for i in range(8):
    a(f'v_add_f32 v{ACC+i}, v{ACC+i}, v{K0+i}')
a(f'''v_cvt_pk_bf16_f32 v{K0}, v{ACC}, v{ACC+1}
v_cvt_pk_bf16_f32 v{K0+1}, v{ACC+2}, v{ACC+3}
v_cvt_pk_bf16_f32 v{K0+2}, v{ACC+4}, v{ACC+5}
v_cvt_pk_bf16_f32 v{K0+3}, v{ACC+6}, v{ACC+7}
s_cmp_eq_u32 s{sT2}, 1
s_cbranch_scc1 L_kv_finv
s_lshl_b32 s{sT1}, s{sT1}, 4
v_add_u32 v8, s{sT1}, v8
v_lshrrev_b32 v10, 1, v9
v_lshlrev_b32 v10, 9, v10
v_lshl_add_u32 v10, v8, 4, v10
v_and_b32 v11, 1, v9
v_lshl_add_u32 v10, v11, 3, v10
v_lshlrev_b32 v11, 3, v8
buffer_store_dwordx2 {v(K0,2)}, v10, s[{R_WS}:{R_WS+3}], s{sU2} offen sc1
s_mov_b64 exec, 0xffff
buffer_store_dwordx2 {v(K0+2,2)}, v11, s[{R_WS}:{R_WS+3}], s{sU2} offen offset:1024 sc1
s_mov_b64 exec, -1
v_mul_f32 v12, v{ACC}, v{ACC}
v_fmac_f32 v12, v{ACC+1}, v{ACC+1}
v_fmac_f32 v12, v{ACC+2}, v{ACC+2}
v_fmac_f32 v12, v{ACC+3}, v{ACC+3}
s_mov_b64 exec, 0xffff
v_fmac_f32 v12, v{ACC+4}, v{ACC+4}
v_fmac_f32 v12, v{ACC+5}, v{ACC+5}
v_fmac_f32 v12, v{ACC+6}, v{ACC+6}
v_fmac_f32 v12, v{ACC+7}, v{ACC+7}
s_mov_b64 exec, -1
v_mov_b32 v13, v12
s_nop 1
v_permlane16_swap_b32 v12, v13
v_add_f32 v12, v12, v13
v_mov_b32 v13, v12
s_nop 1
v_permlane32_swap_b32 v12, v13
v_add_f32 v12, v12, v13
s_branch L_kv_pub
L_kv_finv:
s_mul_i32 s{sT1}, s{sT1}, 672
s_add_u32 s{sU2}, s{sU2}, s{sT1}
s_add_u32 s{sU2}, s{sU2}, 1280
v_lshrrev_b32 v10, 1, v9
v_mul_u32_u24 v10, 336, v10
v_lshl_add_u32 v10, v8, 4, v10
v_and_b32 v11, 1, v9
v_lshl_add_u32 v10, v11, 3, v10
v_cmp_eq_u32 s[{sM0}:{sM0+1}], 4, v8
v_cmp_gt_u32 s[{sM1}:{sM1+1}], 5, v8
v_mov_b32 v13, 0x3f803f80
v_cndmask_b32 v{K0+2}, v{K0+2}, v13, s[{sM0}:{sM0+1}]
v_cndmask_b32 v{K0+3}, v{K0+3}, v13, s[{sM0}:{sM0+1}]
buffer_store_dwordx2 {v(K0,2)}, v10, s[{R_WS}:{R_WS+3}], s{sU2} offen sc1
s_mov_b64 exec, s[{sM1}:{sM1+1}]
buffer_store_dwordx2 {v(K0+2,2)}, v10, s[{R_WS}:{R_WS+3}], s{sU2} offen offset:256 sc1
s_mov_b64 exec, -1
v_cmp_gt_u32 s[{sM1}:{sM1+1}], 4, v8
v_and_b32 v12, 0x7fffffff, v{ACC}
v_and_b32 v13, 0x7fffffff, v{ACC+1}
v_max_u32 v12, v12, v13
v_and_b32 v13, 0x7fffffff, v{ACC+2}
v_and_b32 v14, 0x7fffffff, v{ACC+3}
v_max3_u32 v12, v12, v13, v14
s_mov_b64 exec, s[{sM1}:{sM1+1}]
v_and_b32 v13, 0x7fffffff, v{ACC+4}
v_and_b32 v14, 0x7fffffff, v{ACC+5}
v_max3_u32 v12, v12, v13, v14
v_and_b32 v13, 0x7fffffff, v{ACC+6}
v_and_b32 v14, 0x7fffffff, v{ACC+7}
v_max3_u32 v12, v12, v13, v14
s_mov_b64 exec, -1
v_mov_b32 v13, v12
s_nop 1
v_permlane16_swap_b32 v12, v13
v_max_u32 v12, v12, v13
v_mov_b32 v13, v12
s_nop 1
v_permlane32_swap_b32 v12, v13
v_max_u32 v12, v12, v13
L_kv_pub:''')
for r in (8, 4, 2, 1):
    a(f'v_max_u32_dpp v12, v12, v12 row_ror:{r} row_mask:0xf bank_mask:0xf')
a(f'''v_mov_b32 v13, v12
v_mov_b32 v12, s{sNON}
s_waitcnt vmcnt(0)
s_mov_b64 exec, 1
buffer_store_dwordx2 v[12:13], off, s[{R_WS}:{R_WS+3}], s{sU3} sc1
s_mov_b64 exec, -1''')
stamp(3)
a('s_branch L_A_q')

a('L_A_rb:')
x_scratch_addrs()
a('s_barrier')
stamp(1)
x_transpose(0 + (1 if STAMPS else 0))
a('s_branch L_A_q')

a('L_A_duty:')
srd(R_B, P_WQ, 640 * 1280)
pattern_regs(vPAT, 'swap')
a('s_barrier')
x_loads()
a(f's_mul_i32 s{sU2}, s{sG}, 160')
for i in range(5):
    a(f'''s_add_u32 s{sT0}, s{sRANK}, {4*i}
    s_mul_i32 s{sT1}, s{sT0}, 40960
    s_add_u32 s{sT1}, s{sT1}, s{sU2}
    s_mul_i32 s{sT0}, s{sT0}, 5120''')
    for j in range(5):
        a(f'''s_add_u32 m0, s{sT0}, {L_WQ + 1024*j}
        s_nop 0
        buffer_load_dwordx4 v{vPAT+j}, s[{R_B}:{R_B+3}], s{sT1} offen lds''')
x_scratch_addrs()
stamp(1)
x_transpose(25 + (1 if STAMPS else 0))
a('s_waitcnt vmcnt(0)')
arrive(M_D)

a('L_A_q:')
gemm_lanepart(vGA)
a(f'''s_mul_i32 s{sT0}, s{sKH}, 51200
s_add_u32 s{sT0}, s{sT0}, {L_WQ}
v_add_u32 v{vGA}, s{sT0}, v{vGA}''')
lds_wait(M_D, 4)
stamp(4)
gemm(XF, ACC, AB, lambda i: (vGA, 5120 * i))
arrive(M_E)
a(f'''v_and_b32 v{vT0}, 15, v{vLANE}
v_lshrrev_b32 v{vT1}, 4, v{vLANE}
v_mul_u32_u24 v{vT0}, 336, v{vT0}
v_lshl_add_u32 v{vT0}, v{vT1}, 4, v{vT0}
s_mul_i32 s{sT0}, s{sKH}, 21504
s_mul_i32 s{sT1}, s{sRT}, 5376
s_add_u32 s{sT0}, s{sT0}, s{sT1}
s_add_u32 s{sT0}, s{sT0}, {L_QP}
v_add_u32 v8, s{sT0}, v{vT0}''')
lds_wait(M_E, 8)
for ct in range(5):
    a(f'ds_write_b128 v8, {v(ACC+4*ct,4)} offset:{64*ct}')
a('s_waitcnt lgkmcnt(0)')
arrive(M_F)

SA, SB, OA, OB = 16, 32, 48, 64
KF = [80, 88]
VF = [96, 104]
QA1, QA2, QB1, QB2 = 112, 116, 120, 124
vIDX, vK, vK2, vV = 126, 127, 128, 129
vNA, vNB = 130, 131
vMA, vMB = 132, 133
sSLOW = sU5

a(f'''v_and_b32 v{vT0}, 31, v{vLANE}
v_lshrrev_b32 v{vT1}, 5, v{vLANE}
v_mul_u32_u24 v{vT0}, 336, v{vT0}
s_mul_i32 s{sT0}, s{sRT}, 80
s_add_u32 s{sT0}, s{sT0}, {L_QP}
v_add_u32 v9, s{sT0}, v{vT0}
v_lshl_add_u32 v8, v{vT1}, 5, v9
v_cmp_gt_u32 s[{sM0}:{sM0+1}], 32, v{vLANE}
s_mul_i32 s{sT0}, s{sKH}, {4*TILE}
s_add_u32 s{sT0}, s{sT0}, {L_SL0}
v_lshl_add_u32 v{vK}, v{vLANE}, 4, s{sT0}
v_and_b32 v{vT0}, 31, v{vLANE}
v_lshl_add_u32 v{vK2}, v{vT0}, 3, s{sT0}
v_min_u32 v{vT2}, 20, v{vT0}
v_subrev_u32 v{vT3}, 24, v{vT0}
v_cmp_le_u32 s[{sM1}:{sM1+1}], 28, v{vT0}
v_mul_u32_u24 v{vT1}, 336, v{vT1}
v_cndmask_b32 v{vT2}, v{vT2}, v{vT3}, s[{sM1}:{sM1+1}]
v_lshl_add_u32 v{vT1}, v{vT2}, 4, v{vT1}
v_add_u32 v{vV}, s{sT0}, v{vT1}
v_mov_b32 v{vIDX}, 0xdddddddd''')
lds_wait(M_F, 8)
QSCALE = 20 ** -0.5 * math.log2(math.e)
for rb, (Q1, Q2, vN) in enumerate(((QA1, QA2, vNA), (QB1, QB2, vNB))):
    o = 32 * 336 * rb
    T = 16 + 24 * rb
    a(f'''ds_read_b128 {v(T,4)}, v8 offset:{o}
    ds_read_b128 {v(T+4,4)}, v8 offset:{o+16}
    ds_read_b128 {v(T+8,4)}, v9 offset:{o+64}
    ds_read_b128 {v(T+12,4)}, v8 offset:{o+21504}
    ds_read_b128 {v(T+16,4)}, v8 offset:{o+21504+16}
    ds_read_b128 {v(T+20,4)}, v9 offset:{o+21504+64}''')
a(f's_mov_b32 s{sT0}, {f32(QSCALE)}')
for rb, (Q1, Q2, vN) in enumerate(((QA1, QA2, vNA), (QB1, QB2, vNB))):
    T = 16 + 24 * rb
    a(f's_waitcnt lgkmcnt({6 if rb == 0 else 0})')
    for i in range(12):
        a(f'v_add_f32 v{T+i}, v{T+i}, v{T+12+i}')
    for i in range(8):
        a(f'v_mul_f32 v{T+i}, s{sT0}, v{T+i}')
    for i in range(8, 12):
        a(f'v_mul_f32 v{T+i}, s{sT0}, v{T+i}')
        a(f'v_cndmask_b32 v{T+i}, 0, v{T+i}, s[{sM0}:{sM0+1}]')
    a(f'v_mul_f32 v{vN}, v{T}, v{T}')
    for i in range(1, 12):
        a(f'v_fmac_f32 v{vN}, v{T+i}, v{T+i}')
    for i in range(4):
        a(f'v_cvt_pk_bf16_f32 v{Q1+i}, v{T+2*i}, v{T+2*i+1}')
    for i in range(2):
        a(f'v_cvt_pk_bf16_f32 v{Q2+i}, v{T+8+2*i}, v{T+9+2*i}')
    a(f'''v_mov_b32 v{vT0}, v{vN}
    s_nop 1
    v_permlane32_swap_b32 v{vN}, v{vT0}
    v_add_f32 v{vN}, v{vN}, v{vT0}''')
a(f'v_max_u32 v{vNA}, v{vNA}, v{vNB}')
for i in range(16):
    a(f'v_mov_b32 v{OA+i}, 0')
    a(f'v_mov_b32 v{OB+i}, 0')
for i in range(8, 16):
    a(f'v_mov_b32 v{SB+i}, 0')
for i in range(4, 8):
    a(f'v_mov_b32 v{VF[1]+i}, 0')
stamp(5)
a('s_barrier')
stamp(6)


def rdK(buf, off):
    return [f'ds_read_b128 {v(KF[buf],4)}, v{vK} offset:{off}',
            f'ds_read_b64 {v(KF[buf]+4,2)}, v{vK2} offset:{off+1024}']


def rdV(buf, off):
    return [f'ds_read_b128 {v(VF[buf],4)}, v{vV} offset:{off+1280}',
            f'ds_read_b128 {v(VF[buf]+4,4)}, v{vV} offset:{off+1280+672}']


def qk1(S, kb, Q1):
    return f'v_mfma_f32_32x32x16_bf16 {v(S,16)}, {v(KF[kb],4)}, {v(Q1,4)}, 0'


def qk2(S, kb, Q2):
    return f'v_mfma_f32_32x32x8bf16_1k {v(S,16)}, {v(KF[kb]+4,2)}, {v(Q2,2)}, {v(S,16)}'


def pv(O, vb, j, S):
    return f'v_smfmac_f32_32x32x32_bf16 {v(O,16)}, {v(VF[vb]+4*j,4)}, {v(S+8*j,8)}, v{vIDX}'


def exps(S, i0, i1):
    return [f'v_exp_f32 v{S+i}, v{S+i}' for i in range(i0, i1)]


a(f'ds_read_b64 v[8:9], v{vMISC} offset:{M_KMAX}')
for x in rdK(0, 0) + rdV(0, 0):
    a(x)
a(f'''s_mov_b32 s{sT0}, {f32(3600.0)}
s_mov_b32 s{sT1}, {f32(2.0**40)}
s_waitcnt lgkmcnt(4)
v_mul_f32 v8, v8, v{vNA}
v_cmp_nle_f32 s[{sM0}:{sM0+1}], v8, s{sT0}
v_cmp_lt_u32 s[{sM1}:{sM1+1}], s{sT1}, v9
s_or_b64 vcc, s[{sM0}:{sM0+1}], s[{sM1}:{sM1+1}]''')
if FORCE_SLOW:
    a('s_branch L_slow')
else:
    a('s_cbranch_vccnz L_slow')
a(f'''s_mov_b32 s{sSLOW}, 0
s_waitcnt lgkmcnt(2)
{qk1(SA,0,QA1)}
{qk2(SA,0,QA2)}
s_mov_b32 s{sLOOP}, 4
s_waitcnt lgkmcnt(0)
s_setprio 2
s_nop 7''')
a('.p2align 6\nL_attn:')
for st in range(8):
    sl, i = st >> 2, st & 3
    cur = st & 1
    nxt = cur ^ 1
    nsl, ni = (sl, i + 1) if i < 3 else (sl ^ 1, 0)
    noff = nsl * SLOTD + ni * TILE
    L = [pv(OB, nxt, 1, SB)] + rdK(nxt, noff) + exps(SA, 0, 3) + [qk1(SB, cur, QB1)] + exps(SA, 3, 7) \
        + [qk2(SB, cur, QB2)] + exps(SA, 7, 11) + [pv(OA, cur, 0, SA)] + exps(SA, 11, 16) + rdV(nxt, noff) \
        + exps(SB, 0, 1) + [pv(OA, cur, 1, SA)] + exps(SB, 1, 4) + ['s_waitcnt lgkmcnt(2)', qk1(SA, nxt, QA1)] \
        + exps(SB, 4, 8) + [qk2(SA, nxt, QA2)] + exps(SB, 8, 12) + [pv(OB, cur, 0, SB)] + exps(SB, 12, 16) \
        + ['s_waitcnt lgkmcnt(0)']
    if i == 2:
        L += ['s_barrier', 's_setprio 3']
    else:
        L += ['s_setprio %d' % {3: 2, 0: 1, 1: 0}[i]]
    if st == 7:
        L += [f's_sub_u32 s{sLOOP}, s{sLOOP}, 1', f's_cmp_lg_u32 s{sLOOP}, 0', 's_cbranch_scc1 L_attn']
    for x in L:
        a(x)
a(pv(OB, 1, 1, SB))
a('s_setprio 0')
a('s_branch L_epi')

a('L_slow:')
a(f'''s_mov_b32 s{sSLOW}, 1
v_mov_b32 v{vMA}, 0xff7fffff
v_mov_b32 v{vMB}, 0xff7fffff
s_mov_b32 s{sLOOP}, 0
s_waitcnt lgkmcnt(0)
L_slow_tile:''')
for x in rdK(0, 0) + rdV(0, 0):
    a(x)
a('s_waitcnt lgkmcnt(0)')
for (S, O, Q1, Q2, vM) in ((SA, OA, QA1, QA2, vMA), (SB, OB, QB1, QB2, vMB)):
    a(qk1(S, 0, Q1))
    a(qk2(S, 0, Q2))
    a(f'v_max3_f32 v8, v{S}, v{S+1}, v{vM}')
    for i in range(2, 16, 2):
        a(f'v_max3_f32 v8, v{S+i}, v{S+i+1}, v8')
    a(f'''v_mov_b32 v9, v8
    s_nop 1
    v_permlane32_swap_b32 v8, v9
    v_max_f32 v8, v8, v9
    v_sub_f32 v9, v{vM}, v8
    v_exp_f32 v9, v9
    v_mov_b32 v{vM}, v8''')
    for i in range(16):
        a(f'v_sub_f32 v{S+i}, v{S+i}, v8')
    for i in range(16):
        a(f'v_mul_f32 v{O+i}, v{O+i}, v9')
    for x in exps(S, 0, 16):
        a(x)
    a(pv(O, 0, 0, S))
    a(pv(O, 0, 1, S))
a(f'''s_add_u32 s{sLOOP}, s{sLOOP}, 1
s_and_b32 s{sT0}, s{sLOOP}, 3
s_mov_b32 s{sT1}, {TILE}
s_cmp_lg_u32 s{sT0}, 0
s_cbranch_scc1 L_slow_adv
s_barrier
s_and_b32 s{sT0}, s{sLOOP}, 4
s_cmp_lg_u32 s{sT0}, 0
s_mov_b32 s{sT1}, {SLOTD - 3*TILE}
s_cselect_b32 s{sT1}, s{sT1}, {(-SLOTD - 3*TILE) & 0xffffffff}
L_slow_adv:
v_add_u32 v{vK}, s{sT1}, v{vK}
v_add_u32 v{vK2}, s{sT1}, v{vK2}
v_add_u32 v{vV}, s{sT1}, v{vV}
s_cmp_lt_u32 s{sLOOP}, 32
s_cbranch_scc1 L_slow_tile''')

a('L_epi:')
stamp(7)
a(f'''s_lshl_b32 s{sT0}, s{sRT}, 12
s_mul_i32 s{sT1}, s{sKH}, {SLOTD}
s_add_u32 s{sT1}, s{sT1}, s{sT0}
s_add_u32 s{sT1}, s{sT1}, {L_SL0}
v_lshl_add_u32 v8, v{vLANE}, 4, s{sT1}
s_xor_b32 s{sT2}, s{sKH}, 1
s_mul_i32 s{sT2}, s{sT2}, {SLOTD}
s_add_u32 s{sT2}, s{sT2}, s{sT0}
s_add_u32 s{sT2}, s{sT2}, {L_SL0}
v_lshl_add_u32 v9, v{vLANE}, 4, s{sT2}
s_lshl_b32 s{sT0}, s{sW}, 2
s_add_u32 s{sT1}, s{sT0}, {L_MISC + M_PE1}
v_mov_b32 v10, s{sT1}
s_xor_b32 s{sT1}, s{sT1}, 16
v_mov_b32 v11, s{sT1}
s_cmp_eq_u32 s{sKH}, 0
s_cbranch_scc1 L_e_k0''')
for i in range(16):
    a(f'v_swap_b32 v{OA+i}, v{OB+i}')
a(f'v_swap_b32 v{vMA}, v{vMB}')
a('L_e_k0:')
a(f'v_mov_b32 v{OB+13}, v{vMB}')
for q in range(4):
    a(f'ds_write_b128 v8, {v(OB+4*q,4)} offset:{1024*q}')
a(f'''s_waitcnt lgkmcnt(0)
s_mov_b64 exec, 1
ds_write_b32 v10, v{vONE}
s_mov_b64 exec, -1''')
a(f'''s_lshl_b32 s{sT0}, s{sG}, 2
s_add_u32 s{sT0}, s{sT0}, s{sRT}          ; H
s_lshr_b32 s{sT1}, s{sT0}, 3
s_mul_i32 s{sT1}, s{sT1}, 5               ; 5*(H>>3)
s_bfe_u32 s{sT2}, s{sT0}, 0x20001
s_add_u32 s{sT2}, s{sT2}, s{sT1}
s_lshl_b32 s{sT3}, s{sRHO}, 2
s_lshl_b32 s{sT4}, s{sKH}, 1
s_add_u32 s{sT3}, s{sT3}, s{sT4}
s_mul_i32 s{sT3}, s{sT3}, 20480
s_add_u32 s{sT3}, s{sT3}, {WS_OX}
s_lshl_b32 s{sT2}, s{sT2}, 10
s_add_u32 s{sU0}, s{sT2}, s{sT3}
s_and_b32 s{sT2}, s{sT0}, 1
s_lshl_b32 s{sT2}, s{sT2}, 9
s_add_u32 s{sU0}, s{sU0}, s{sT2}          ; + kq(=2*(H&1))*256
s_add_u32 s{sT1}, s{sT1}, 4
s_lshl_b32 s{sT1}, s{sT1}, 10
s_add_u32 s{sU1}, s{sT1}, s{sT3}
s_bfe_u32 s{sT1}, s{sT0}, 0x10002         ; (hh>>2)
s_lshl_b32 s{sT1}, s{sT1}, 9
s_add_u32 s{sU1}, s{sU1}, s{sT1}
s_and_b32 s{sT1}, s{sT0}, 1
s_lshl_b32 s{sT1}, s{sT1}, 8
s_add_u32 s{sU1}, s{sU1}, s{sT1}
s_bfe_u32 s{sT1}, s{sT0}, 0x10001
s_lshl_b32 s{sT1}, s{sT1}, 3
s_add_u32 s{sU1}, s{sU1}, s{sT1}
s_lshl_b32 s{sT1}, s{sRHO}, 1
s_add_u32 s{sT1}, s{sT1}, s{sKH}
s_lshl_b32 s{sT1}, s{sT1}, 5
s_add_u32 s{sT1}, s{sT1}, s{sT0}
s_lshl_b32 s{sU2}, s{sT1}, 7
s_add_u32 s{sU2}, s{sU2}, {WS_FO}
v_bfe_u32 v12, v{vLANE}, 4, 1
v_mul_u32_u24 v12, 20480, v12
v_and_b32 v13, 15, v{vLANE}
v_lshl_add_u32 v13, v13, 4, v12
v_lshrrev_b32 v12, 5, v{vLANE}
v_lshl_add_u32 v12, v12, 8, v13
v_cmp_gt_u32 s[{sM0}:{sM0+1}], 32, v{vLANE}''')
lds_wait_v(11, 1)
for q in range(4):
    a(f'ds_read_b128 {v(SA+4*q,4)}, v9 offset:{1024*q}')
a(f'''s_cmp_eq_u32 s{sSLOW}, 0
s_waitcnt lgkmcnt(0)
s_cbranch_scc1 L_e_fast
v_max_f32 v14, v{vMA}, v{SA+13}
v_sub_f32 v15, v{vMA}, v14
v_sub_f32 v14, v{SA+13}, v14
v_exp_f32 v15, v15
v_exp_f32 v14, v14
s_nop 0''')
for i in range(13):
    a(f'v_mul_f32 v{OA+i}, v{OA+i}, v15')
    a(f'v_mul_f32 v{SA+i}, v{SA+i}, v14')
a('L_e_fast:')
for i in range(13):
    a(f'v_add_f32 v{OA+i}, v{OA+i}, v{SA+i}')
a(f'''v_cndmask_b32 v14, v{OA+8}, v{OA+12}, s[{sM0}:{sM0+1}]
v_rcp_f32 v14, v14
s_nop 0''')
for i in range(12):
    a(f'v_mul_f32 v{OA+i}, v{OA+i}, v14')
for i in range(6):
    a(f'v_cvt_pk_bf16_f32 v{SA+i}, v{OA+2*i}, v{OA+2*i+1}')
a(f'''buffer_store_dwordx4 {v(SA,4)}, v12, s[{R_WS}:{R_WS+3}], s{sU0} offen sc1
s_mov_b64 exec, s[{sM0}:{sM0+1}]
buffer_store_dwordx2 {v(SA+4,2)}, v13, s[{R_WS}:{R_WS+3}], s{sU1} offen sc1
s_mov_b64 exec, -1''')
vOA = 120
vOL = 130
gemm_lanepart(vOL)
a(f's_cmp_eq_u32 s{sKH}, 0')
for i in range(10):
    a(f'''s_mov_b32 s{sT0}, {WO_UNIT[i]}
    s_cselect_b32 s{sT0}, s{sT0}, {WO_UNIT[10+i]}
    v_add_u32 v{vOA+i}, s{sT0}, v{vOL}''')
a(f'''v_mov_b32 v14, s{sNON}
s_waitcnt vmcnt(0)
s_mov_b64 exec, 1
buffer_store_dword v14, off, s[{R_WS}:{R_WS+3}], s{sU2} sc1
s_mov_b64 exec, -1''')
stamp(8)
a(f'''s_lshl_b32 s{sT1}, s{sRHO}, 1
s_lshr_b32 s{sT2}, s{sRT}, 1
s_add_u32 s{sT1}, s{sT1}, s{sT2}
s_lshl_b32 s{sT1}, s{sT1}, 1
s_add_u32 s{sT1}, s{sT1}, s{sKH}
s_lshl_b32 s{sT1}, s{sT1}, 11
s_add_u32 s{sT1}, s{sT1}, {WS_FO}
v_and_b32 v12, 15, v{vLANE}
v_lshlrev_b32 v12, 7, v12
s_lshl_b32 s{sT2}, s{sRHO}, 2
s_add_u32 s{sT2}, s{sT2}, s{sRT}
s_mul_i32 s{sT2}, s{sT2}, 20480
s_mul_i32 s{sT3}, s{sKH}, 10240
s_add_u32 s{sT2}, s{sT2}, s{sT3}
s_add_u32 s{sU0}, s{sT2}, {WS_OX}
v_lshlrev_b32 v13, 4, v{vLANE}
s_mov_b32 s{sSPIN}, {SPIN}
L_e_poll:
buffer_load_dword v14, v12, s[{R_WS}:{R_WS+3}], s{sT1} offen sc1
s_waitcnt vmcnt(0)
v_cmp_ne_u32 vcc, s{sNON}, v14
s_cbranch_vccz L_e_go
s_sub_u32 s{sSPIN}, s{sSPIN}, 1
s_cmp_lg_u32 s{sSPIN}, 0
s_cbranch_scc1 L_e_poll
L_e_go:''')
stamp(9)
for i in range(10):
    if i in (4, 8):
        a(f's_add_u32 s{sU0}, s{sU0}, 4096')
    a(f'buffer_load_dwordx4 {v(XF+4*i,4)}, v13, s[{R_WS}:{R_WS+3}], s{sU0} offen offset:{1024*(i&3)} sc1')
srd(R_C, P_OUT, 2048 * 2560)
gemm(XF, ACC, AB, lambda i: (vOA + i, 0), waits={i: f's_waitcnt vmcnt({9-i})' for i in range(10)})
stamp(10)
a(f'''s_lshl_b32 s{sT0}, s{sW}, 2
s_add_u32 s{sT1}, s{sT0}, {L_MISC + M_PE2}
v_mov_b32 v10, s{sT1}
s_xor_b32 s{sT1}, s{sT1}, 16
v_mov_b32 v11, s{sT1}
s_lshl_b32 s{sT0}, s{sRHO}, 6
s_lshl_b32 s{sT1}, s{sRT}, 4
s_add_u32 s{sT0}, s{sT0}, s{sT1}
s_mul_i32 s{sT0}, s{sT0}, 2560
s_mul_i32 s{sT1}, s{sG}, 160
s_add_u32 s{sU0}, s{sT0}, s{sT1}
v_and_b32 v12, 15, v{vLANE}
v_mul_u32_u24 v12, 2560, v12
v_lshrrev_b32 v13, 4, v{vLANE}
v_lshl_add_u32 v12, v13, 3, v12
s_cmp_eq_u32 s{sKH}, 0
s_cbranch_scc0 L_e_r1''')
for kh, (send, keep) in enumerate((((3, 4), (0, 1, 2)), ((0, 1, 2), (3, 4)))):
    if kh == 1:
        a('L_e_r1:')
    for n, ct in enumerate(send):
        a(f'ds_write_b128 v9, {v(ACC+4*ct,4)} offset:{1024*n}')
    a(f'''s_waitcnt lgkmcnt(0)
    s_mov_b64 exec, 1
    ds_write_b32 v10, v{vONE}
    s_mov_b64 exec, -1''')
    lds_wait_v(11, 1)
    for n, ct in enumerate(keep):
        a(f'ds_read_b128 {v(AB+4*n,4)}, v8 offset:{1024*n}')
    for n, ct in enumerate(keep):
        a(f's_waitcnt lgkmcnt({len(keep)-1-n})')
        for i in range(4):
            a(f'v_add_f32 v{ACC+4*ct+i}, v{ACC+4*ct+i}, v{AB+4*n+i}')
        a(f'''v_cvt_pk_bf16_f32 v{AB+4*n}, v{ACC+4*ct}, v{ACC+4*ct+1}
        v_cvt_pk_bf16_f32 v{AB+4*n+1}, v{ACC+4*ct+2}, v{ACC+4*ct+3}
        buffer_store_dwordx2 {v(AB+4*n,2)}, v12, s[{R_C}:{R_C+3}], s{sU0} offen offset:{32*ct}''')
    if STAMPS:
        a('s_waitcnt vmcnt(0)')
    stamp(11)
    a('s_endpgm')

a('L_S:')
a(f'''s_sub_u32 s{sSI}, s{sW}, 8
s_mul_i32 s{sCH}, s{sRHO}, 20
s_lshl_b32 s{sT0}, s{sG}, 1
s_mul_i32 s{sT1}, s{sG}, 3
s_sub_u32 s{sT1}, s{sT1}, 4
s_cmp_lt_u32 s{sG}, 4
s_cselect_b32 s{sT0}, s{sT0}, s{sT1}
s_cselect_b32 s{sU4}, 2, 3
s_add_u32 s{sCH}, s{sCH}, s{sT0}
s_add_u32 s{sCH}, s{sCH}, s{sSI}
s_cmp_lt_u32 s{sSI}, s{sU4}
s_cbranch_scc1 L_kgen
s_cmp_eq_u32 s{sSI}, s{sU4}
s_cbranch_scc1 L_tu
buffer_load_dword v8, off, s[{R_WS}:{R_WS+3}], 0 sc1
s_barrier
s_waitcnt vmcnt(0)
v_readfirstlane_b32 s{sNON}, v8
s_add_u32 s{sNON}, s{sNON}, {NONCE_K}
s_branch L_poll_kv''')

UR = 16
a('L_tu:')
srd(R_A, P_U, 2048 * 1280)
a(f'buffer_load_dword v8, off, s[{R_WS}:{R_WS+3}], 0 sc1')
pattern_regs(56, 'lin')
a(f'''s_mul_i32 s{sT0}, s{sRHO}, {64*1280}
s_mul_i32 s{sT1}, s{sG}, 160
s_add_u32 s{sT0}, s{sT0}, s{sT1}
s_add_u32 s{sT1}, s{sT0}, 40960''')
for j in range(10):
    a(f'buffer_load_dwordx4 {v(UR+4*j,4)}, v{56+j%5}, s[{R_A}:{R_A+3}], s{sT0 if j < 5 else sT1} offen')
a(f'''s_barrier
s_cmp_lt_u32 s{sG}, 4
s_mov_b32 s{sU0}, {L_SL0 + 21504}
s_cselect_b32 s{sU0}, s{sU0}, {L_SL0}
s_cbranch_scc0 L_tu_go''')
lds_wait(M_X, 8)
a(f'''L_tu_go:
v_lshl_add_u32 v9, v{vLANE}, 4, s{sU0}
v_lshrrev_b32 v{vT0}, 4, v{vLANE}
v_bfe_u32 v{vT1}, v{vLANE}, 2, 2
v_lshl_add_u32 v{vT1}, v{vT0}, 3, v{vT1}
v_mul_u32_u24 v{vT1}, 160, v{vT1}
v_and_b32 v{vT2}, 3, v{vLANE}
v_lshl_add_u32 v{vT1}, v{vT2}, 3, v{vT1}
v_add_u32 v10, s{sU0}, v{vT1}
v_and_b32 v{vT1}, 15, v{vLANE}
v_lshlrev_b32 v{vT1}, 12, v{vT1}
v_lshl_add_u32 v11, v{vT0}, 4, v{vT1}
s_mul_i32 s{sT0}, s{sG}, {80*4096}
s_lshl_b32 s{sT1}, s{sRHO}, 7
s_add_u32 s{sT0}, s{sT0}, s{sT1}
s_add_u32 s{sU1}, s{sT0}, {WS_UT}
s_waitcnt vmcnt(10)
v_readfirstlane_b32 s{sNON}, v8
s_add_u32 s{sNON}, s{sNON}, {NONCE_K}''')
for j in range(10):
    a(f'''s_waitcnt vmcnt({9-j})
    ds_write_b128 v9, {v(UR+4*j,4)} offset:{1024*j}''')
for ct in range(5):
    for h in range(2):
        d = UR + 8 * ct + 4 * h
        for e in range(2):
            a(f'ds_read_b64_tr_b16 {v(d+2*e,2)}, v10 offset:{(32*h+4*e)*160 + 32*ct}')
    if ct == 2:
        pass
    a('s_waitcnt lgkmcnt(0)')
    for h in range(2):
        a(f'buffer_store_dwordx4 {v(UR+8*ct+4*h,4)}, v11, s[{R_WS}:{R_WS+3}], s{sU1} offen offset:{64*h} sc1')
    a(f's_add_u32 s{sU1}, s{sU1}, 65536')
lds_wait(M_X, 8)
a(f'''s_lshl_b32 s{sT0}, s{sRHO}, 3
s_add_u32 s{sT0}, s{sT0}, s{sG}
s_lshl_b32 s{sT0}, s{sT0}, 7
s_add_u32 s{sT0}, s{sT0}, {WS_FU}
v_mov_b32 v8, s{sNON}
s_waitcnt vmcnt(0)
s_mov_b64 exec, 1
buffer_store_dword v8, off, s[{R_WS}:{R_WS+3}], s{sT0} sc1
s_mov_b64 exec, -1''')
stamp(2)
a(f'''s_cmp_eq_u32 s{sSI}, 3
s_cbranch_scc1 L_poll_kv
s_barrier''')
for n in range(8):
    a('s_barrier')
a('s_branch L_yout')

a('L_poll_kv:')
vS_L16 = 60
a(f'''v_lshlrev_b32 v9, 7, v{vLANE}
v_lshlrev_b32 v{vS_L16}, 4, v{vLANE}
s_mov_b32 s{sT0}, {WS_FKV}
s_mov_b32 s{sT1}, {WS_FKV + 8192}
s_mov_b32 s{sT2}, {WS_FKV + 16384}
s_mov_b32 s{sT3}, {WS_FKV + 24576}
v_mov_b32 v8, s{sNON}
s_mov_b64 exec, 1
ds_write_b32 v{vMISC}, v8 offset:{M_NONCE}
s_mov_b64 exec, -1
s_mov_b32 s{sSPIN}, {SPIN}
L_pk:''')
for i in range(4):
    a(f'buffer_load_dwordx2 {v(16+2*i,2)}, v9, s[{R_WS}:{R_WS+3}], s{sT0+i} offen sc1')
a(f'''s_waitcnt vmcnt(0)
v_xor_b32 v10, s{sNON}, v16
v_xor_b32 v11, s{sNON}, v18
v_xor_b32 v12, s{sNON}, v20
v_xor_b32 v13, s{sNON}, v22
v_or_b32 v10, v10, v11
v_or3_b32 v10, v10, v12, v13
v_cmp_ne_u32 vcc, 0, v10
s_cbranch_vccz L_pk_go
s_sub_u32 s{sSPIN}, s{sSPIN}, 1
s_cmp_lg_u32 s{sSPIN}, 0
s_cbranch_scc1 L_pk
L_pk_go:''')
stamp(3)


def kv_dma(n):
    a(f'''s_add_u32 s{sT0}, s{sXCD}, {n}
    s_and_b32 s{sT0}, s{sT0}, 7
    s_mul_i32 s{sT0}, s{sT0}, {GROUP}
    s_add_u32 s{sT0}, s{sT0}, {WS_KVT}''')
    base = L_SL0 + (n & 1) * SLOTD
    for i in range(21):
        if i and i % 4 == 0:
            a(f's_add_u32 s{sT0}, s{sT0}, 4096')
        if i % 4 == 0:
            a(f's_mov_b32 m0, {base + 1024*i}\ns_nop 0')
        a(f'buffer_load_dwordx4 v{vS_L16}, s[{R_WS}:{R_WS+3}], s{sT0} offen offset:{1024*(i&3)} sc1 lds')


kv_dma(0)
a(f'''v_max_u32 v10, v17, v19
v_max3_u32 v10, v10, v21, v23''')
for r in (8, 4, 2):
    a(f'v_max_u32_dpp v10, v10, v10 row_ror:{r} row_mask:0xf bank_mask:0xf')
a(f'''v_mov_b32 v11, v10
s_nop 1
v_permlane16_swap_b32 v10, v11
v_max_u32 v10, v10, v11
v_mov_b32 v11, v10
s_nop 1
v_permlane32_swap_b32 v10, v11
v_max_u32 v10, v10, v11
v_lshl_add_u32 v11, v{vLANE}, 2, v{vMISC}
s_mov_b64 exec, 3
ds_write_b32 v11, v10 offset:{M_KMAX}
s_mov_b64 exec, -1''')
srd(R_A, P_WO, 640 * 1280)
vWN, vWL = 64, 70
pattern_regs(vWN, 'won')
pattern_regs(vWL, 'wol')
a(f's_mul_i32 s{sU0}, s{sG}, 160')


def wo_unit(st):
    sb, k = divmod(st, 5)
    row0 = 160 * sb + (40 * k if k < 4 else 0)
    pat = vWN if k < 4 else vWL
    a(f's_add_u32 s{sT0}, s{sU0}, {row0*1280}')
    for j in range(5):
        a(f'''s_mov_b32 m0, {WO_UNIT[st] + 1024*j}
        s_nop 0
        buffer_load_dwordx4 v{pat+j}, s[{R_A}:{R_A+3}], s{sT0} offen lds''')


a('s_waitcnt vmcnt(0) lgkmcnt(0)')
stamp(5)
a('s_barrier')
a('s_setprio 3')
kv_dma(1)
wo_unit(0)
a('s_waitcnt vmcnt(5)\ns_barrier')
plan = {0: [1, 2], 1: [3, 4], 2: [5, 6], 3: [7, 8], 4: [9, 10], 5: [11, 12], 6: [13, 14, 15, 16, 17, 18, 19]}
for n in range(7):
    if n + 2 < 8:
        kv_dma(n + 2)
    if n == 6:
        a(f'''s_lshl_b32 s{sT0}, s2, 7
        s_add_u32 s{sT0}, s{sT0}, {WS_FY}
        v_mov_b32 v8, s{sNON}
        s_mov_b64 exec, 1
        buffer_store_dword v8, off, s[{R_WS}:{R_WS+3}], s{sT0} sc1
        s_mov_b64 exec, -1''')
    for st in plan[n]:
        wo_unit(st)
    if n == 1:
        a(f'''s_cmp_lg_u32 s2, 0
        s_cbranch_scc1 L_noz
        s_mov_b32 s{sSPIN}, {SPIN}
        s_mov_b32 s{sT0}, {WS_FU}
        s_mov_b32 s{sT1}, {WS_FU + 8192}
        s_mov_b32 s{sT2}, {WS_FU + 16384}
        s_mov_b32 s{sT3}, {WS_FU + 24576}
        L_zp:''')
        for i in range(4):
            a(f'buffer_load_dword v{16+i}, v9, s[{R_WS}:{R_WS+3}], s{sT0+i} offen sc1')
        a(f'''s_waitcnt vmcnt(0)
        v_xor_b32 v10, s{sNON}, v16
        v_xor_b32 v11, s{sNON}, v17
        v_xor_b32 v12, s{sNON}, v18
        v_xor_b32 v13, s{sNON}, v19
        v_or_b32 v10, v10, v11
        v_or3_b32 v10, v10, v12, v13
        v_cmp_ne_u32 vcc, 0, v10
        s_cbranch_vccz L_zp_go
        s_sub_u32 s{sSPIN}, s{sSPIN}, 1
        s_cmp_lg_u32 s{sSPIN}, 0
        s_cbranch_scc1 L_zp
        L_zp_go:
        v_mov_b32 v8, s{sNON}
        s_mov_b64 exec, 1
        buffer_store_dword v8, off, s[{R_WS}:{R_WS+3}], 0 sc1
        s_mov_b64 exec, -1
        s_waitcnt vmcnt(0)
        L_noz:''')
    if n < 6:
        a(f's_waitcnt vmcnt({5*len(plan[n])})')
    else:
        a('s_waitcnt vmcnt(0)')
    a('s_barrier')
a('s_branch L_yout')

a('L_kgen:')
PRM = 16
vLDT, vDSK = 28, 29
srd(R_A, P_LA, 640 * 384)
srd(R_B, P_AI, 640 * 384)
srd(R_C, P_CR, 640 * 384)
srd(R_D, P_CI, 640 * 384)
srd(R_E, P_LDT, 1280)
srd(R_F, P_DS, 1280)
a(f'''v_lshlrev_b32 v8, 1, v{vLANE}
s_mul_i32 s{sT0}, s{sCH}, 384
s_lshl_b32 s{sT1}, s{sCH}, 1
buffer_load_ushort v{vLDT}, off, s[{R_E}:{R_E+3}], s{sT1}''')
for c in range(3):
    for i, r in enumerate((R_A, R_B, R_C, R_D)):
        a(f'buffer_load_ushort v{PRM+4*c+i}, v8, s[{r}:{r+3}], s{sT0} offen offset:{128*c}')
a(f'buffer_load_ushort v{vDSK}, off, s[{R_F}:{R_F+3}], s{sT1}')
a('s_barrier')
vDT, vXW, vXRA, vXRB = 30, 31, 32, 33
KACC = 36
FA, FB = 52, 84
Z1, W1, W2, Z256, Z512, Z768, Z1024, ZT, ZU = 116, 118, 120, 122, 124, 126, 128, 130, 132
XE, XO, Y0, Y2, Y4, Y6, YC, TM, TN = 134, 136, 138, 140, 142, 144, 146, 148, 150
PK = 152
LOG2E = math.log2(math.e)
L_HI = struct.unpack('<f', struct.pack('<f', LOG2E))[0]
L_LO = LOG2E - L_HI
a(f'''s_mul_i32 s{sU0}, s{sSI}, {AREA}
v_lshl_add_u32 v{vXW}, v{vLANE}, 2, s{sU0}
v_and_b32 v{vT0}, 31, v{vLANE}
v_lshrrev_b32 v{vT1}, 5, v{vLANE}
v_lshlrev_b32 v{vT1}, 4, v{vT1}
v_add_u32 v{vT1}, s{sU0}, v{vT1}
v_mov_b32 v{vT3}, 272
v_mad_u32_u24 v{vXRA}, v{vT0}, v{vT3}, v{vT1}
v_min_u32 v{vT0}, 20, v{vT0}
v_mad_u32_u24 v{vXRB}, v{vT0}, v{vT3}, v{vT1}
s_mov_b32 s{sU1}, {f32(L_HI)}
s_mov_b32 s{sU2}, {f32(L_LO)}
s_mov_b32 s{sU3}, {f32(math.log(2.0))}''')
for i in range(16):
    a(f'v_mov_b32 v{KACC+i}, 0')


def exp_bf16(dst, src, t0, t1):
    a(f'''v_mul_f32 v{t0}, s{sU1}, v{src}
    v_fma_f32 v{t1}, v{src}, s{sU1}, -v{t0}
    v_fmac_f32 v{t1}, s{sU2}, v{src}
    v_exp_f32 v{t0}, v{t0}
    v_mul_f32 v{t1}, s{sU3}, v{t1}
    v_fmac_f32 v{t0}, v{t0}, v{t1}
    v_cvt_pk_bf16_f32 v{dst}, v{t0}, v{t0}
    v_and_b32 v{dst}, 0xffff0000, v{dst}''')


def cmul(d, x, y, t):
    a(f'''v_pk_mul_f32 {v(t,2)}, {v(x,2)}, {v(y,2)} op_sel:[0,0] op_sel_hi:[0,1]
    v_pk_fma_f32 {v(d,2)}, {v(x,2)}, {v(y,2)}, {v(t,2)} op_sel:[1,1,0] op_sel_hi:[1,0,1] neg_lo:[1,0,0]''')


pkn = [0]


def putX(i, x):
    p = PK + (pkn[0] & 3)
    pkn[0] += 1
    a(f'''v_cvt_pk_bf16_f32 v{p}, v{x}, v{x+1}
    ds_write_b32 v{vXW}, v{p} offset:{272*i}''')


def putY(i, y):
    p = PK + (pkn[0] & 3)
    pkn[0] += 1
    a(f'''v_cvt_pk_bf16_f32 v{p}, v{y}, -v{y+1}
    ds_write_b32 v{vXW}, v{p} offset:{272*i}''')


a(f'''s_waitcnt vmcnt(13)
v_lshlrev_b32 v{vLDT}, 16, v{vLDT}''')
exp_bf16(vDT, vLDT, 8, 9)
a(f'''s_mov_b32 s{sLOOP}, 3
s_waitcnt vmcnt(0)''')
stamp(2)
a('L_kg_loop:')
a(f'''v_lshlrev_b32 v8, 16, v{PRM}
v_lshlrev_b32 v9, 16, v{PRM+1}
v_lshlrev_b32 v{Y0}, 16, v{PRM+2}
v_lshlrev_b32 v{Y0+1}, 16, v{PRM+3}''')
for i in range(8):
    a(f'v_mov_b32 v{PRM+i}, v{PRM+4+i}')
exp_bf16(10, 8, 11, 12)
a(f'''v_mul_f32 v10, v10, v{vDT}
v_mul_f32 v9, v9, v{vDT}
v_mul_f32 v10, {f32(-L_HI)}, v10
v_mul_f32 v9, 0.15915494, v9
v_add_f32 v8, v{vDT}, v{vDT}
v_mul_f32 v{Y0}, v{Y0}, v8
v_mul_f32 v{Y0+1}, v{Y0+1}, v8''')
for (dst, p) in ((W1, 8.0), (Z1, 1.0), (Z256, 256.0)):
    if p == 1.0:
        a(f'''v_exp_f32 v11, v10
        v_fract_f32 v12, v9''')
    else:
        a(f'''v_mul_f32 v11, {f32(p)}, v10
        v_mul_f32 v12, {f32(p)}, v9
        v_exp_f32 v11, v11
        v_fract_f32 v12, v12''')
    a(f'''v_cos_f32 v13, v12
    v_sin_f32 v14, v12
    s_nop 0
    v_mul_f32 v{dst}, v11, v13
    v_mul_f32 v{dst+1}, v11, v14''')
a(f'''v_mov_b32 v{PK}, 0x3f80
ds_write_b32 v{vXW}, v{PK}''')
pkn[0] = 1
cmul(W2, W1, W1, TM)
putX(1, W1)
cmul(XO, W1, W2, TN)
putX(2, W2)
cmul(XE, W2, W2, TM)
putX(3, XO)
for i in range(5, 32, 2):
    cmul(XO, XO, W2, TN)
    putX(i - 1, XE)
    if i + 1 < 32:
        cmul(XE, XE, W2, TM)
    putX(i, XO)
for t in range(8):
    a(f'ds_read_b128 {v(FA+4*t,4)}, v{vXRA} offset:{32*t}')
putY(0, Y0)
cmul(YC, Y0, Z1, TM)
cmul(Z512, Z256, Z256, TN)
putY(1, YC)
cmul(Y2, YC, Z1, TM)
cmul(Z768, Z512, Z256, TN)
putY(2, Y2)
cmul(YC, Y2, Z1, TM)
cmul(Z1024, Z512, Z512, TN)
putY(3, YC)
cmul(Y4, YC, Z1, TM)
cmul(ZT, Y0, Z256, TN)
putY(4, Y4)
cmul(YC, Y4, Z1, TM)
putY(8, ZT)
cmul(ZU, Y2, Z256, TN)
putY(5, YC)
cmul(Y6, YC, Z1, TM)
putY(9, ZU)
cmul(ZT, Y4, Z256, TN)
putY(6, Y6)
cmul(YC, Y6, Z1, TM)
putY(10, ZT)
cmul(ZU, Y6, Z256, TN)
putY(7, YC)
cmul(ZT, Y0, Z512, TM)
putY(11, ZU)
cmul(ZU, Y4, Z512, TN)
putY(12, ZT)
cmul(ZT, Y0, Z768, TM)
putY(13, ZU)
cmul(ZU, Y4, Z768, TN)
putY(14, ZT)
cmul(Y2, Y0, Z1024, TM)
putY(15, ZU)
cmul(ZT, Y2, Z256, TN)
putY(16, Y2)
cmul(ZU, Y2, Z512, TM)
putY(17, ZT)
cmul(ZT, Y2, Z768, TN)
putY(18, ZU)
cmul(ZU, Y2, Z1024, TM)
putY(19, ZT)
putY(20, ZU)
for t in range(8):
    a(f'ds_read_b128 {v(FB+4*t,4)}, v{vXRB} offset:{32*t}')
for t in range(8):
    a(f's_waitcnt lgkmcnt({7-t})')
    a(f'v_mfma_f32_32x32x16_bf16 {v(KACC,16)}, {v(FA+4*t,4)}, {v(FB+4*t,4)}, {v(KACC,16)}')
a(f'''s_sub_u32 s{sLOOP}, s{sLOOP}, 1
s_cmp_lg_u32 s{sLOOP}, 0
s_cbranch_scc1 L_kg_loop''')
stamp(3)
a(f'''v_and_b32 v{vT0}, 31, v{vLANE}
v_mul_u32_u24 v{vT0}, 144, v{vT0}
v_lshrrev_b32 v{vT1}, 5, v{vLANE}
v_lshl_add_u32 v{vT0}, v{vT1}, 4, v{vT0}
v_add_u32 v8, s{sU0}, v{vT0}
v_and_b32 v{vT0}, 1, v{vLANE}
v_lshrrev_b32 v{vT1}, 1, v{vLANE}
v_lshlrev_b32 v{vT1}, 2, v{vT1}
v_add_u32 v{vT1}, s{sU0}, v{vT1}
v_mov_b32 v{vT2}, 576
v_mad_u32_u24 v9, v{vT0}, v{vT2}, v{vT1}
v_mov_b32 v{vT2}, 288
v_mad_u32_u24 v10, v{vT0}, v{vT2}, v{vT1}
; seg2: (l>>5)*288 + (l&31)*4
v_lshrrev_b32 v{vT0}, 5, v{vLANE}
v_mul_u32_u24 v{vT0}, 288, v{vT0}
v_and_b32 v{vT1}, 31, v{vLANE}
v_lshl_add_u32 v{vT0}, v{vT1}, 2, v{vT0}
v_add_u32 v11, s{sU0}, v{vT0}
; seg3: (l>>4)*144 + (l&15)*8
v_lshrrev_b32 v{vT0}, 4, v{vLANE}
v_mul_u32_u24 v{vT0}, 144, v{vT0}
v_and_b32 v{vT1}, 15, v{vLANE}
v_lshl_add_u32 v{vT0}, v{vT1}, 3, v{vT0}
v_add_u32 v12, s{sU0}, v{vT0}
v_mov_b32 v13, s{sU0}''')
for q in range(4):
    a(f'ds_write_b128 v8, {v(KACC+4*q,4)} offset:{32*q}')
G = 52
k0, k1, k2, k3, km = G, G + 1, G + 2, G + 3, G + 4
a1, b1, c1, z1 = G + 5, G + 6, G + 7, G + 8
a2, b2, c2 = G + 9, G + 10, G + 11
a3, b3, c3 = G + 12, G + 13, G + 14
for i in range(4):
    a(f'ds_read_b32 v{k0+i}, v9 offset:{144*i}')
a(f'''ds_read_b32 v{a1}, v10 offset:{8*144}
ds_read_b32 v{b1}, v10 offset:{9*144}
ds_read_b32 v{c1}, v13 offset:{12*144}
ds_read_b32 v{z1}, v13 offset:{7*144 + 31*4}
ds_read_b32 v{a2}, v11 offset:{12*144}
ds_read_b32 v{b2}, v11 offset:{13*144}
ds_read_b32 v{c2}, v13 offset:{16*144}
ds_read_b64 {v(a3,2)}, v12 offset:{16*144}
ds_read_b32 v{c3}, v13 offset:{20*144}
v_lshlrev_b32 v{vT0}, 3, v{vLANE}
v_sub_u32 v8, s{sU0}, v{vT0}
v_add_u32 v8, {4*1022}, v8
v_lshlrev_b32 v{vT0}, 4, v{vLANE}
v_sub_u32 v9, s{sU0}, v{vT0}
v_add_u32 v9, {4*764}, v9
v_lshlrev_b32 v{vT0}, 5, v{vLANE}
v_sub_u32 v10, s{sU0}, v{vT0}
v_add_u32 v10, {4*504}, v10
v_add_u32 v11, 4160, v8
v_add_u32 v12, 4160, v9
v_add_u32 v14, 4160, v10
v_subrev_u32 v15, 512, v8
v_subrev_u32 v34, 512, v11
v_lshl_add_u32 v35, v{vLANE}, 2, s{sU0}
s_waitcnt lgkmcnt(0)
v_mov_b32_dpp v{km}, v{k3} wave_shr:1 row_mask:0xf bank_mask:0xf bound_ctrl:0
v_mov_b32_dpp v{c1}, v{a1} wave_shl:1 row_mask:0xf bank_mask:0xf
v_mov_b32_dpp v{c2}, v{a2} wave_shl:1 row_mask:0xf bank_mask:0xf
v_mov_b32_dpp v{c3}, v{a3} wave_shl:1 row_mask:0xf bank_mask:0xf
v_cmp_eq_u32 s[{sM0}:{sM0+1}], 0, v{vLANE}
s_nop 1
v_cndmask_b32 v{z1}, v{a1}, v{z1}, s[{sM0}:{sM0+1}]''')
E = 68


def pk(d, lo, hi):
    a(f'v_cvt_pk_bf16_f32 v{d}, v{lo}, v{hi}')


pk(E, k3, k2); pk(E + 1, k1, k0); pk(E + 2, k2, k1); pk(E + 3, k0, km)
a(f'''ds_write_b64 v8, {v(E,2)}
ds_write_b64 v11, {v(E+2,2)}''')
pk(E + 4, c1, b1); pk(E + 5, a1, a1); pk(E + 6, b1, a1); pk(E + 7, a1, z1)
a(f'''ds_write_b64 v15, {v(E+4,2)}
ds_write_b64 v34, {v(E+6,2)}''')
pk(E + 8, c2, c2); pk(E + 9, b2, b2); pk(E + 10, b2, a2); pk(E + 11, a2, a2)
pk(E + 12, c2, b2)
a(f'''v_mov_b32 v{E+13}, v{E+9}
v_mov_b32 v{E+14}, v{E+11}
v_mov_b32 v{E+15}, v{E+11}
ds_write_b128 v9, {v(E+8,4)}
ds_write_b128 v12, {v(E+12,4)}''')
F = E + 16
pk(F, c3, c3); pk(F + 2, b3, b3); pk(F + 5, b3, a3); pk(F + 6, a3, a3); pk(F + 9, c3, b3)
a(f'''v_mov_b32 v{F+1}, v{F}
v_mov_b32 v{F+3}, v{F+2}
v_mov_b32 v{F+4}, v{F+2}
v_mov_b32 v{F+7}, v{F+6}
v_mov_b32 v{F+8}, v{F}
v_mov_b32 v{F+10}, v{F+2}
v_mov_b32 v{F+11}, v{F+2}
v_mov_b32 v{F+12}, v{F+2}
v_mov_b32 v{F+13}, v{F+6}
v_mov_b32 v{F+14}, v{F+6}
v_mov_b32 v{F+15}, v{F+6}
ds_write_b128 v10, {v(F,4)}
ds_write_b128 v10, {v(F+4,4)} offset:16
ds_write_b128 v14, {v(F+8,4)}
ds_write_b128 v14, {v(F+12,4)} offset:16
v_mov_b32 v{vT0}, 0
s_mov_b64 exec, 0xffff
ds_write_b32 v35, v{vT0} offset:4096
ds_write_b32 v35, v{vT0} offset:{4096+4160}
s_mov_b64 exec, -1''')
vCA0, vCA1, vCB, vUE = 30, 31, 32, 33
a(f'''; A: area + copy*4160 + 4*(1023 - rho + 4 hi - 240) ; copy = 1 for even rows
v_bfe_u32 v{vT0}, v{vLANE}, 1, 4
v_lshrrev_b32 v{vT1}, 5, v{vLANE}
v_lshlrev_b32 v{vT1}, 2, v{vT1}
v_sub_u32 v{vT0}, v{vT1}, v{vT0}
v_add_u32 v{vT0}, 783, v{vT0}
v_lshlrev_b32 v{vT0}, 2, v{vT0}
v_and_b32 v{vT1}, 1, v{vLANE}
v_xor_b32 v{vT1}, 1, v{vT1}
v_mul_u32_u24 v{vT1}, 4160, v{vT1}
v_add3_u32 v{vCA0}, v{vT0}, v{vT1}, s{sU0}
v_subrev_u32 v{vCA1}, 2048, v{vCA0}
s_mul_i32 s{sU1}, s{sSI}, {UTA}
s_add_u32 s{sU1}, s{sU1}, {L_UTA}
v_and_b32 v{vT0}, 31, v{vLANE}
v_mul_u32_u24 v{vT0}, 80, v{vT0}
v_lshrrev_b32 v{vT1}, 5, v{vLANE}
v_lshl_add_u32 v{vT2}, v{vT1}, 4, v{vT0}
v_add_u32 v{vT2}, 80, v{vT2}
v_add_u32 v{vCB}, s{sU1}, v{vT2}
v_lshl_add_u32 v{vT2}, v{vT1}, 3, v{vT0}
v_add_u32 v{vT2}, 2560, v{vT2}
v_add_u32 v{vUE}, s{sU1}, v{vT2}
s_waitcnt lgkmcnt(0)''')
stamp(5)
a('s_barrier')
a('s_setprio 3')
a(f'''ds_read_b32 v8, v{vMISC} offset:{M_NONCE}
v_lshl_add_u32 v9, v{vLANE}, 4, s{sU1}
v_mov_b32 v36, 0
v_mov_b32 v37, 0
v_mov_b32 v38, 0
v_mov_b32 v39, 0
ds_write_b128 v9, v[36:39]
ds_write_b128 v9, v[36:39] offset:1024
ds_write_b128 v9, v[36:39] offset:2048
v_and_b32 v10, 31, v{vLANE}
v_lshlrev_b32 v10, 10, v10
s_lshl_b32 s{sT1}, s{sXCD}, 7
s_add_u32 s{sT1}, s{sT1}, {WS_FU}
s_waitcnt lgkmcnt(0)
v_readfirstlane_b32 s{sNON}, v8
s_mov_b32 s{sSPIN}, {SPIN}
L_pu:
buffer_load_dword v11, v10, s[{R_WS}:{R_WS+3}], s{sT1} offen sc1
s_waitcnt vmcnt(0)
v_cmp_ne_u32 vcc, s{sNON}, v11
s_cbranch_vccz L_pu_go
s_sub_u32 s{sSPIN}, s{sSPIN}, 1
s_cmp_lg_u32 s{sSPIN}, 0
s_cbranch_scc1 L_pu
L_pu_go:
s_lshl_b32 s{sT0}, s{sCH}, 12
s_add_u32 s{sT0}, s{sT0}, {WS_UT}''')
for j in range(5):
    a(f'''v_add_u32 v{vT0}, {64*j}, v{vLANE}
    v_mul_u32_u24 v{vT1}, 13108, v{vT0}
    v_lshrrev_b32 v{vT1}, 16, v{vT1}
    v_mul_u32_u24 v{vT2}, 5, v{vT1}
    v_sub_u32 v{vT0}, v{vT0}, v{vT2}
    v_min_u32 v{vT0}, 3, v{vT0}
    v_lshlrev_b32 v{vT1}, 6, v{vT1}
    v_lshl_add_u32 v{36+j}, v{vT0}, 4, v{vT1}
    s_add_u32 m0, s{sU1}, {2560 + 1024*j}
    s_nop 0
    buffer_load_dwordx4 v{36+j}, s[{R_WS}:{R_WS+3}], s{sT0} offen sc1 lds''')
N0, N1 = 36, 52
CF = 68
a('s_waitcnt vmcnt(0)')
for i in range(32):
    a(f'v_mov_b32 v{N0+i}, 0')
stamp(6)


def conv_reads(k):
    t, h = k >> 1, k & 1
    d = CF + 16 * (k & 1)
    off = 16 * (15 - (t & 15)) + 8 * h
    L = []
    if t == 16 and h == 0:
        L += [f'v_subrev_u32 v{vCA0}, 1024, v{vCA0}', f'v_subrev_u32 v{vCA1}, 1024, v{vCA1}']
    L += [f'ds_read2_b32 {v(d,2)}, v{vCA0} offset0:{off} offset1:{off+1}',
          f'ds_read2_b32 {v(d+2,2)}, v{vCA0} offset0:{off+2} offset1:{off+3}',
          f'ds_read_b128 {v(d+12,4)}, v{vCB} offset:{(31-t)*80 + 32*h + 2560}',
          f'ds_read_b128 {v(d+8,4)}, v{vCB} offset:{(31-t)*80 + 32*h}',
          f'ds_read2_b32 {v(d+4,2)}, v{vCA1} offset0:{off} offset1:{off+1}',
          f'ds_read2_b32 {v(d+6,2)}, v{vCA1} offset0:{off+2} offset1:{off+3}']
    return L


for x in conv_reads(0):
    a(x)
a('s_barrier')
cuts = [13, 26, 39, 52, 64]
k = 0
for n in range(5):
    while k < cuts[n]:
        d = CF + 16 * (k & 1)
        e = CF + 16 * ((k + 1) & 1)
        nx = conv_reads(k + 1) if k + 1 < 64 else []
        a('s_waitcnt lgkmcnt(0)')
        a(f'v_mfma_f32_32x32x16_bf16 {v(N1,16)}, {v(d,4)}, {v(d+12,4)}, {v(N1,16)}')
        for x in nx[:-3]:
            a(x)
        a(f'v_mfma_f32_32x32x16_bf16 {v(N0,16)}, {v(d,4)}, {v(d+8,4)}, {v(N0,16)}')
        for x in nx[-3:]:
            a(x)
        a(f'v_mfma_f32_32x32x16_bf16 {v(N1,16)}, {v(d+4,4)}, {v(d+8,4)}, {v(N1,16)}')
        k += 1
    a('s_barrier')
stamp(7)
a(f'v_lshlrev_b32 v{vDSK}, 16, v{vDSK}')
for b in range(2):
    for q in range(4):
        a(f'ds_read_b64 {v(CF+8*b+2*q,2)}, v{vUE} offset:{2560*b + 16*q}')
for b in range(2):
    N = (N0, N1)[b]
    for q in range(4):
        u = CF + 8 * b + 2 * q
        a(f's_waitcnt lgkmcnt({7 - 4*b - q})')
        a(f'''v_lshlrev_b32 v8, 16, v{u}
        v_and_b32 v9, 0xffff0000, v{u}
        v_lshlrev_b32 v10, 16, v{u+1}
        v_and_b32 v11, 0xffff0000, v{u+1}
        v_fmac_f32 v{N+4*q}, v8, v{vDSK}
        v_fmac_f32 v{N+4*q+1}, v9, v{vDSK}
        v_fmac_f32 v{N+4*q+2}, v10, v{vDSK}
        v_fmac_f32 v{N+4*q+3}, v11, v{vDSK}
        v_cvt_pk_bf16_f32 v{u}, v{N+4*q}, v{N+4*q+1}
        v_cvt_pk_bf16_f32 v{u+1}, v{N+4*q+2}, v{N+4*q+3}''')
for b in range(2):
    for q in range(4):
        a(f'ds_write_b64 v{vUE}, {v(CF+8*b+2*q,2)} offset:{2560*b + 16*q}')
a(f'''; read back: lane -> block (l>>2) + 16 jj, part l&3
v_lshrrev_b32 v{vT0}, 2, v{vLANE}
v_mul_u32_u24 v{vT0}, 80, v{vT0}
v_and_b32 v{vT1}, 3, v{vLANE}
v_lshl_add_u32 v{vT0}, v{vT1}, 4, v{vT0}
v_add_u32 v8, s{sU1}, v{vT0}
v_lshrrev_b32 v{vT0}, 3, v{vLANE}
v_mov_b32 v{vT2}, 81920
v_mul_lo_u32 v{vT0}, v{vT0}, v{vT2}
v_and_b32 v{vT1}, 7, v{vLANE}
v_lshl_add_u32 v9, v{vT1}, 4, v{vT0}
s_lshl_b32 s{sT0}, s{sCH}, 7
s_add_u32 s{sT0}, s{sT0}, {WS_YT}''')
for jj in range(4):
    a(f'ds_read_b128 {v(N0+4*jj,4)}, v8 offset:{2560 + 1280*jj}')
for jj in range(4):
    a(f'''s_waitcnt lgkmcnt({3-jj})
    buffer_store_dwordx4 {v(N0+4*jj,4)}, v9, s[{R_WS}:{R_WS+3}], s{sT0} offen sc1
    s_add_u32 s{sT0}, s{sT0}, {8*81920}''')
a('''s_waitcnt vmcnt(0)
s_barrier
s_barrier''')

a('L_yout:')
stamp(8)
srd(R_B, P_OUT, 2048 * 2560)
a(f'''ds_read_b32 v8, v{vMISC} offset:{M_NONCE}
v_and_b32 v10, 31, v{vLANE}
v_lshlrev_b32 v10, 10, v10
s_lshl_b32 s{sT1}, s{sG}, 7
s_add_u32 s{sT1}, s{sT1}, {WS_FY}
s_mul_i32 s{sU0}, s{sSI}, 3072
s_add_u32 s{sU0}, s{sU0}, {L_YS}
s_mul_i32 s{sT0}, s{sRHO}, 81920
s_mul_i32 s{sT2}, s{sG}, 10240
s_add_u32 s{sT0}, s{sT0}, s{sT2}
s_lshl_b32 s{sT2}, s{sSI}, 5
s_add_u32 s{sT0}, s{sT0}, s{sT2}
s_add_u32 s{sU1}, s{sT0}, {WS_YT}''')
for j in range(3):
    a(f'''v_add_u32 v{vT0}, {64*j}, v{vLANE}
    v_min_u32 v{vT0}, 159, v{vT0}
    v_lshrrev_b32 v{vT1}, 1, v{vT0}
    v_lshlrev_b32 v{vT1}, 7, v{vT1}
    v_and_b32 v{vT0}, 1, v{vT0}
    v_lshl_add_u32 v{16+j}, v{vT0}, 4, v{vT1}''')
a(f'''; tr-read address: priv + (8 o + r)*32 + 8 c, o = 4 b + kq (clamped to 9)
v_lshrrev_b32 v{vT0}, 4, v{vLANE}
v_bfe_u32 v{vT1}, v{vLANE}, 2, 2
v_and_b32 v{vT2}, 3, v{vLANE}
v_lshlrev_b32 v{vT2}, 3, v{vT2}
v_lshl_add_u32 v{vT2}, v{vT1}, 5, v{vT2}
v_add_u32 v{vT2}, s{sU0}, v{vT2}
v_lshl_add_u32 v20, v{vT0}, 8, v{vT2}
v_and_b32 v{vT3}, 1, v{vT0}
v_lshl_add_u32 v21, v{vT3}, 8, v{vT2}
v_and_b32 v{vT1}, 15, v{vLANE}
v_mul_u32_u24 v{vT1}, 2560, v{vT1}
v_lshl_add_u32 v22, v{vT0}, 4, v{vT1}
s_lshl_b32 s{sT0}, s{sRHO}, 6
s_lshl_b32 s{sT2}, s{sSI}, 4
s_add_u32 s{sT0}, s{sT0}, s{sT2}
s_mul_i32 s{sT0}, s{sT0}, 2560
s_mul_i32 s{sT2}, s{sG}, 160
s_add_u32 s{sT0}, s{sT0}, s{sT2}
s_add_u32 s{sU2}, s{sT0}, 1280
s_waitcnt lgkmcnt(0)
v_readfirstlane_b32 s{sNON}, v8
s_mov_b32 s{sSPIN}, {SPIN}
L_py:
buffer_load_dword v11, v10, s[{R_WS}:{R_WS+3}], s{sT1} offen sc1
s_waitcnt vmcnt(0)
v_cmp_ne_u32 vcc, s{sNON}, v11
s_cbranch_vccz L_py_go
s_sub_u32 s{sSPIN}, s{sSPIN}, 1
s_cmp_lg_u32 s{sSPIN}, 0
s_cbranch_scc1 L_py
L_py_go:''')
for j in range(3):
    a(f'''s_add_u32 m0, s{sU0}, {1024*j}
    s_nop 0
    buffer_load_dwordx4 v{16+j}, s[{R_WS}:{R_WS+3}], s{sU1} offen sc1 lds''')
a('s_waitcnt vmcnt(0)')
for b in range(3):
    r, o = (20, 1024 * b) if b < 2 else (21, 2048)
    a(f'''ds_read_b64_tr_b16 {v(24+4*b,2)}, v{r} offset:{o}
    ds_read_b64_tr_b16 {v(26+4*b,2)}, v{r} offset:{o+128}''')
a(f'''s_waitcnt lgkmcnt(0)
buffer_store_dwordx4 v[24:27], v22, s[{R_B}:{R_B+3}], s{sU2} offen
buffer_store_dwordx4 v[28:31], v22, s[{R_B}:{R_B+3}], s{sU2} offen offset:64
s_mov_b32 exec_hi, 0
buffer_store_dwordx4 v[32:35], v22, s[{R_B}:{R_B+3}], s{sU2} offen offset:128
s_mov_b64 exec, -1''')
if STAMPS:
    a('s_waitcnt vmcnt(0)')
stamp(9)
a('L_exit:\ns_endpgm')

lines, nins = hazard_pass(a.lines, verbose='-v' in sys.argv)
ref = open('cdna_kernels/%s.s.ref' % NAME).read().split('\n')
head = []
for l in ref:
    if l.startswith('; @launch'):
        break
    head.append(l)
txt = '\n'.join(head) + f'''
; @launch grid=(256,1,1) block=(768,1,1) lds={LDS_BYTES}
.amdgcn_target "amdgcn-amd-amdhsa--gfx950"
.text
.globl {NAME}_kernel
.p2align 8
.type {NAME}_kernel,@function
{NAME}_kernel:
''' + '\n'.join(lines) + f'''
.section .rodata,"a"
.p2align 6
.amdhsa_kernel {NAME}_kernel
  .amdhsa_next_free_vgpr 168
  .amdhsa_next_free_sgpr 100
  .amdhsa_accum_offset 168
  .amdhsa_group_segment_fixed_size 0
  .amdhsa_kernarg_size 120
  .amdhsa_user_sgpr_count 2
  .amdhsa_user_sgpr_kernarg_segment_ptr 1
  .amdhsa_system_sgpr_workgroup_id_x 1
  .amdhsa_float_denorm_mode_32 3
.end_amdhsa_kernel
'''
out = [x for x in sys.argv[1:] if not x.startswith('-')]
path = out[0] if out else 'cdna_kernels/%s.s' % NAME
open(path, 'w').write(txt)
print('wrote', path, len(lines), 'lines; hazard nops inserted:', nins)
```

```python
import sys, struct, math
sys.path.insert(0, 'work')
from asmlib import Asm, hazard_pass, v, s

NAME = 'concat_heads__grouped_kv_mqa__ssm_conv_s4d__prompt'
STAMPS = '--stamps' in sys.argv
FORCE_SLOW = '--slow' in sys.argv
DBGT = '--dbgt' in sys.argv


def f32(x):
    return '0x%08x' % struct.unpack('<I', struct.pack('<f', x))[0]


WS_Z = 0
WS_FKV = 4096
WS_FU = WS_FKV + 256 * 128
WS_FY = WS_FU + 256 * 128
WS_FO = 131072
WS_KVT = 0x80000
WS_UT = 0x100000
WS_YT = 0x400000
WS_OX = 0x700000
WS_ST = 0xA00000
WS_BYTES = 0x1000000
TILE = 2624
GROUP = 8 * TILE
NONCE_K = 0x9E3779B9

L_A = 0
AREA = 8704
L_WKV = 17408
L_SL0 = 26112
L_SCR = 43008
L_MISC = 59392
L_WQ = 61440
L_SL1 = 61440
L_QP = 61440
L_UTA = 82944
UTA = 7680
L_YS = 93184
LDS_BYTES = 163840
SLOTD = L_SL1 - L_SL0
WO_UNIT = [105984 + 5120 * i for i in range(11)] + [47616, 52736] + [5120 * i for i in range(5)] + [82944, 88064]
L_EX1 = L_SL0
M_W, M_D, M_E, M_F, M_X = 0, 4, 8, 12, 16
M_PKV = 20
M_KMAX, M_VMAX, M_NONCE = 40, 44, 36
M_PE1 = 64
M_PE2 = 96
SPIN = 400000

P_X, P_WQ, P_WK, P_WV, P_WO, P_U, P_LA, P_AI = 16, 18, 20, 22, 24, 26, 28, 30
P_CR, P_CI, P_LDT, P_DS, P_OUT, P_DBG, P_WS = 32, 34, 36, 38, 40, 42, 44
sW, sRHO, sG, sXCD, sNON = 3, 4, 5, 6, 7
sT0, sT1, sT2, sT3, sT4, sT5, sT6, sT7 = 8, 9, 10, 11, 12, 13, 14, 15
R_WS = 48
R_A, R_B, R_C, R_D, R_E, R_F = 52, 56, 60, 64, 68, 72
sRT, sKH, sSLOT, sRANK, sCH, sSI, sSPIN, sLOOP = 76, 77, 78, 79, 80, 81, 82, 83
sM0, sM1 = 84, 86
sU0, sU1, sU2, sU3, sU4, sU5 = 88, 89, 90, 91, 92, 93
sSTAMP = 94

a = Asm()


def srd(dst, ptr, nbytes):
    a(f'''s_mov_b32 s{dst}, s{ptr}
    s_mov_b32 s{dst+1}, s{ptr+1}
    s_mov_b32 s{dst+2}, {nbytes}
    s_mov_b32 s{dst+3}, 0x20000''')


vLANE, vMISC, vONE, vT0, vT1, vT2, vT3 = 1, 2, 3, 4, 5, 6, 7


def arrive(word, val_reg=vONE):
    a(f'''s_mov_b64 exec, 1
    ds_add_u32 v{vMISC}, v{val_reg} offset:{word}
    s_mov_b64 exec, -1''')


def lds_wait(word, target, tmp=vT0):
    L = a.label('w')
    D = a.label('wd')
    a(f'''s_mov_b32 s{sSPIN}, {SPIN}
    {L}:
    ds_read_b32 v{tmp}, v{vMISC} offset:{word}
    s_waitcnt lgkmcnt(0)
    v_readfirstlane_b32 s{sT7}, v{tmp}
    s_cmp_ge_u32 s{sT7}, {target}
    s_cbranch_scc1 {D}
    s_sub_u32 s{sSPIN}, s{sSPIN}, 1
    s_cmp_lg_u32 s{sSPIN}, 0
    s_cbranch_scc1 {L}
    {D}:''')


def lds_wait_v(vaddr, target, tmp=vT0):
    L = a.label('w')
    D = a.label('wd')
    a(f'''s_mov_b32 s{sSPIN}, {SPIN}
    {L}:
    ds_read_b32 v{tmp}, v{vaddr}
    s_waitcnt lgkmcnt(0)
    v_readfirstlane_b32 s{sT7}, v{tmp}
    s_cmp_ge_u32 s{sT7}, {target}
    s_cbranch_scc1 {D}
    s_sub_u32 s{sSPIN}, s{sSPIN}, 1
    s_cmp_lg_u32 s{sSPIN}, 0
    s_cbranch_scc1 {L}
    {D}:''')


def stamp(idx):
    if DBGT:
        a(f'''s_memrealtime s[{sSTAMP}:{sSTAMP+1}]
        s_mov_b32 s96, s{P_DBG}
        s_mov_b32 s97, s{P_DBG+1}
        s_mov_b32 s98, 256
        s_mov_b32 s99, 0x20000
        s_waitcnt lgkmcnt(0)
        {'s_not_b32 s%d, s%d' % (sSTAMP, sSTAMP) if idx == 0 else ''}
        v_mov_b32 v166, s{sSTAMP}
        s_cmp_lt_u32 s{sW}, 8
        s_cbranch_scc0 {'L_dbgskip%d' % len(a.lines)}
        s_mov_b64 exec, 1
        buffer_atomic_umax v166, off, s[96:99], 0 offset:{4*idx}
        s_mov_b64 exec, -1
        {'L_dbgskip%d' % len(a.lines)}:''')
        return
    if not STAMPS:
        return
    a(f'''s_memrealtime s[{sSTAMP}:{sSTAMP+1}]
    s_memtime s[96:97]
    s_mul_i32 s{sT7}, s2, 12
    s_add_u32 s{sT7}, s{sT7}, s{sW}
    s_lshl_b32 s{sT7}, s{sT7}, 7
    s_add_u32 s{sT7}, s{sT7}, {WS_ST + idx*8}
    s_waitcnt lgkmcnt(0)
    v_mov_b32 v166, s{sSTAMP}
    v_mov_b32 v167, s96
    s_mov_b64 exec, 1
    buffer_store_dwordx2 v[166:167], off, s[{R_WS}:{R_WS+3}], s{sT7}
    s_mov_b64 exec, -1''')


def div10(dst_q, dst_r, src, tmp):
    a(f'''v_mul_u32_u24 v{dst_q}, 6554, v{src}
    v_lshrrev_b32 v{dst_q}, 16, v{dst_q}
    v_mul_u32_u24 v{tmp}, 10, v{dst_q}
    v_sub_u32 v{dst_r}, v{src}, v{tmp}''')


def pattern_regs(dst, kind):
    for j in range(5):
        a(f'v_add_u32 v{vT0}, {64*j}, v{vLANE}')
        div10(vT1, vT2, vT0, vT3)
        if kind == 'swap':
            a(f'''v_and_b32 v{vT3}, 0x13, v{vT1}
            v_bfe_u32 v{vT0}, v{vT1}, 2, 1
            v_lshl_or_b32 v{vT3}, v{vT0}, 3, v{vT3}
            v_bfe_u32 v{vT0}, v{vT1}, 3, 1
            v_lshl_or_b32 v{vT1}, v{vT0}, 2, v{vT3}''')
        elif kind == 'won':
            a(f'''v_lshrrev_b32 v{vT0}, 4, v{vT1}
            v_lshl_add_u32 v{vT1}, v{vT0}, 2, v{vT1}''')
        elif kind == 'wol':
            a(f'''v_lshrrev_b32 v{vT0}, 2, v{vT1}
            v_mul_u32_u24 v{vT0}, 20, v{vT0}
            v_and_b32 v{vT1}, 3, v{vT1}
            v_add3_u32 v{vT1}, v{vT0}, v{vT1}, 16''')
        a(f'''v_mul_u32_u24 v{vT1}, 1280, v{vT1}
        v_lshl_add_u32 v{dst+j}, v{vT2}, 4, v{vT1}''')


def gemm_lanepart(dst):
    a(f'''v_bfe_u32 v{vT0}, v{vLANE}, 5, 1
    v_lshlrev_b32 v{vT0}, 4, v{vT0}
    v_bfe_u32 v{vT1}, v{vLANE}, 4, 1
    v_lshl_add_u32 v{vT0}, v{vT1}, 2, v{vT0}
    v_bfe_u32 v{vT1}, v{vLANE}, 2, 2
    v_add_u32 v{vT0}, v{vT0}, v{vT1}
    v_mul_u32_u24 v{vT0}, 160, v{vT0}
    v_and_b32 v{vT1}, 3, v{vLANE}
    v_lshl_add_u32 v{dst}, v{vT1}, 3, v{vT0}''')


def gemm(xf, acc, ab, addr, waits=None):
    def reads(i, ct):
        r, base = addr(i)
        d = ab + 20 * (i & 1) + 4 * ct
        return [f'ds_read_b64_tr_b16 v[{d}:{d+1}], v{r} offset:{base + 32*ct}',
                f'ds_read_b64_tr_b16 v[{d+2}:{d+3}], v{r} offset:{base + 1280 + 32*ct}']
    for ct in range(5):
        for x in reads(0, ct):
            a(x)
    for i in range(10):
        if waits and i in waits:
            a(waits[i])
        for ct in range(5):
            n = 8 if i < 9 else 8 - 2 * ct
            a(f's_waitcnt lgkmcnt({n})')
            A = ab + 20 * (i & 1) + 4 * ct
            C = '0' if i == 0 else v(acc + 4 * ct, 4)
            a(f'v_mfma_f32_16x16x32_bf16 {v(acc+4*ct,4)}, {v(A,4)}, {v(xf+4*i,4)}, {C}')
            if i < 9:
                for x in reads(i + 1, ct):
                    a(x)


a(f'''s_cmp_ge_u32 s2, 256
s_cbranch_scc1 L_exit
s_load_dwordx16 s[16:31], s[0:1], 0
s_load_dwordx8 s[32:39], s[0:1], 64
s_load_dwordx4 s[40:43], s[0:1], 96
s_load_dwordx2 s[44:45], s[0:1], 112
v_lshrrev_b32 v{vT0}, 6, v0
v_and_b32 v{vLANE}, 63, v0
v_readfirstlane_b32 s{sW}, v{vT0}
s_and_b32 s{sXCD}, s2, 7
s_lshr_b32 s{sT0}, s2, 3
s_and_b32 s{sG}, s{sT0}, 7
s_lshr_b32 s{sT0}, s{sT0}, 3
s_lshl_b32 s{sRHO}, s{sXCD}, 2
s_add_u32 s{sRHO}, s{sRHO}, s{sT0}
v_mov_b32 v{vMISC}, {L_MISC}
v_mov_b32 v{vONE}, 1
v_mov_b32 v{vT1}, 0
v_lshl_add_u32 v{vT0}, v{vLANE}, 2, v{vMISC}
s_cmp_lg_u32 s{sW}, 0
s_cbranch_scc1 L_noinit
ds_write_b32 v{vT0}, v{vT1}
L_noinit:
s_waitcnt lgkmcnt(0)''')
srd(R_WS, P_WS, WS_BYTES)
stamp(0)
a(f'''s_cmp_ge_u32 s{sW}, 8
s_cbranch_scc1 L_S''')

XF = 16
ACC = 56
AB = 80
vXA0, vXA1 = 120, 121
vXR0, vXR1 = 122, 123
vPAT = 124
vGA = 129
vZ = 131
vKVA = 132

srd(R_A, P_X, 2048 * 1280)
a(f'''buffer_load_dword v{vZ}, off, s[{R_WS}:{R_WS+3}], 0 sc1
s_and_b32 s{sRT}, s{sW}, 3
s_lshr_b32 s{sKH}, s{sW}, 2
s_and_b32 s{sT0}, s{sRT}, 1
s_lshl_b32 s{sT1}, s{sKH}, 1
s_add_u32 s{sRANK}, s{sT0}, s{sT1}
v_lshrrev_b32 v{vT0}, 3, v{vLANE}
v_and_b32 v{vT1}, 7, v{vLANE}
v_mul_u32_u24 v{vT2}, 1280, v{vT0}
v_lshl_add_u32 v{vXA0}, v{vT1}, 4, v{vT2}
s_lshl_b32 s{sU0}, s{sRHO}, 6
s_lshl_b32 s{sT0}, s{sRT}, 4
s_add_u32 s{sU0}, s{sU0}, s{sT0}
s_mul_i32 s{sU0}, s{sU0}, 1280
s_mul_i32 s{sT0}, s{sKH}, 640
s_add_u32 s{sU0}, s{sU0}, s{sT0}
s_add_u32 s{sU1}, s{sU0}, 10240
s_lshr_b32 s{sT0}, s{sRT}, 1
s_bfe_u32 s{sT1}, s{sG}, 0x10001
s_cmp_eq_u32 s{sT0}, s{sT1}
s_cselect_b32 s{sT2}, 4, 0
s_add_u32 s{sSLOT}, s{sRANK}, s{sT2}''')


def x_loads():
    for i2 in range(5):
        a(f'buffer_load_dwordx4 {v(XF+8*i2,4)}, v{vXA0}, s[{R_A}:{R_A+3}], s{sU0} offen offset:{128*i2}')
        a(f'buffer_load_dwordx4 {v(XF+8*i2+4,4)}, v{vXA0}, s[{R_A}:{R_A+3}], s{sU1} offen offset:{128*i2}')


def x_scratch_addrs():
    a(f'''s_add_u32 s{sT0}, s{sSLOT}, 2
    s_and_b32 s{sT0}, s{sT0}, 7
    s_lshl_b32 s{sT0}, s{sT0}, 11
    s_add_u32 s{sT0}, s{sT0}, {L_SCR}
    v_lshrrev_b32 v{vT0}, 3, v{vLANE}
    v_and_b32 v{vT1}, 7, v{vLANE}
    v_lshrrev_b32 v{vT2}, 4, v{vLANE}
    v_xor_b32 v{vT1}, v{vT1}, v{vT2}
    v_lshlrev_b32 v{vT0}, 7, v{vT0}
    v_lshl_add_u32 v{vT0}, v{vT1}, 4, v{vT0}
    v_add_u32 v{vXA0}, s{sT0}, v{vT0}
    v_xor_b32 v{vXA1}, 64, v{vXA0}
    v_and_b32 v{vT0}, 15, v{vLANE}
    v_bfe_u32 v{vT1}, v{vLANE}, 1, 3
    v_xor_b32 v{vT1}, v{vT1}, v{vT2}
    v_lshlrev_b32 v{vT0}, 7, v{vT0}
    v_lshl_add_u32 v{vT0}, v{vT1}, 4, v{vT0}
    v_add_u32 v{vXR0}, s{sT0}, v{vT0}
    v_xor_b32 v{vXR1}, 64, v{vXR0}''')


def x_transpose(extra):
    for i2 in range(5):
        a(f's_waitcnt vmcnt({extra + 8 - 2*i2})')
        a(f'''ds_write_b128 v{vXA0}, {v(XF+8*i2,4)}
        ds_write_b128 v{vXA1}, {v(XF+8*i2+4,4)} offset:1024
        ds_read_b128 {v(XF+8*i2,4)}, v{vXR0}
        ds_read_b128 {v(XF+8*i2+4,4)}, v{vXR1}''')
    a(f'''v_readfirstlane_b32 s{sNON}, v{vZ}
    s_add_u32 s{sNON}, s{sNON}, {NONCE_K}
    s_waitcnt lgkmcnt(0)''')
    arrive(M_X)


a(f'''s_cmp_eq_u32 s{sT2}, 0
s_cbranch_scc1 L_A_duty''')
x_loads()
a(f'''s_cmp_ge_u32 s{sG}, 4
s_cbranch_scc1 L_A_rb''')
a(f'''s_and_b32 s{sT0}, s{sG}, 1
s_cmp_eq_u32 s{sT0}, 0
s_cselect_b32 s{R_B}, s{P_WK}, s{P_WV}
s_cselect_b32 s{R_B+1}, s{P_WK+1}, s{P_WV+1}
s_mov_b32 s{R_B+2}, 25600
s_mov_b32 s{R_B+3}, 0x20000
v_lshlrev_b32 v{vT0}, 4, v{vLANE}''')
for i in range(7):
    a(f'''s_add_u32 s{sT0}, s{sRANK}, {4*i}
    s_min_u32 s{sT0}, s{sT0}, 24
    s_lshl_b32 s{sT0}, s{sT0}, 10
    s_add_u32 m0, s{sT0}, {L_WKV}
    s_nop 0
    buffer_load_dwordx4 v{vT0}, s[{R_B}:{R_B+3}], s{sT0} offen lds''')
x_scratch_addrs()
a('s_barrier')
stamp(1)
x_transpose(7 + (1 if (STAMPS or DBGT) else 0))
a('s_waitcnt vmcnt(0)')
arrive(M_W)
a(f'''v_lshrrev_b32 v{vT0}, 4, v{vLANE}
v_bfe_u32 v{vT1}, v{vLANE}, 2, 2
v_lshl_add_u32 v{vT0}, v{vT0}, 3, v{vT1}
v_mul_u32_u24 v{vT0}, 40, v{vT0}
v_and_b32 v{vT1}, 3, v{vLANE}
v_lshl_add_u32 v{vT0}, v{vT1}, 3, v{vT0}
s_mul_i32 s{sT0}, s{sKH}, 12800
s_add_u32 s{sT0}, s{sT0}, {L_WKV}
v_add_u32 v{vKVA}, s{sT0}, v{vT0}''')
lds_wait(M_W, 4)
stamp(2)


def kv_mfmas(isv):
    def reads(i):
        d = AB + 8 * (i % 3)
        return [f'ds_read_b64_tr_b16 v[{d+4*ct+2*e}:{d+4*ct+2*e+1}], v{vKVA} offset:{1280*i + 160*e + 32*ct}'
                for ct in range(2) for e in range(2)]
    for x in reads(0) + reads(1):
        a(x)
    for i in range(10):
        a(f's_waitcnt lgkmcnt({4 if i < 9 else 0})')
        d = AB + 8 * (i % 3)
        for ct in range(2):
            C = '0' if i == 0 else v(ACC + 4 * ct, 4)
            W, X = v(d + 4 * ct, 4), v(XF + 4 * i, 4)
            a(f'v_mfma_f32_16x16x32_bf16 {v(ACC+4*ct,4)}, {X if isv else W}, {W if isv else X}, {C}')
        if i + 2 < 10:
            for x in reads(i + 2):
                a(x)


a(f'''s_and_b32 s{sT0}, s{sG}, 1
s_cmp_eq_u32 s{sT0}, 1
s_cbranch_scc1 L_kv_v''')
kv_mfmas(False)
a('s_branch L_kv_red\nL_kv_v:')
kv_mfmas(True)
a('L_kv_red:')
a(f'''s_and_b32 s{sT0}, s{sRT}, 1
s_lshl_b32 s{sT0}, s{sT0}, 11
s_add_u32 s{sT0}, s{sT0}, {L_SCR}
v_lshl_add_u32 v{vT2}, v{vLANE}, 4, s{sT0}
s_lshl_b32 s{sT0}, s{sRT}, 2
s_add_u32 s{sT0}, s{sT0}, {L_MISC + M_PKV}
v_mov_b32 v{vT3}, s{sT0}
s_cmp_eq_u32 s{sKH}, 0
s_cbranch_scc1 L_kv_fin
ds_write_b128 v{vT2}, {v(ACC,4)}
ds_write_b128 v{vT2}, {v(ACC+4,4)} offset:1024
s_waitcnt lgkmcnt(0)
s_mov_b64 exec, 1
ds_write_b32 v{vT3}, v{vONE}
s_mov_b64 exec, -1
s_branch L_A_q
L_kv_fin:''')
lds_wait_v(vT3, 1)
K0 = AB
a(f'''ds_read_b128 {v(K0,4)}, v{vT2}
ds_read_b128 {v(K0+4,4)}, v{vT2} offset:1024
s_lshl_b32 s{sT0}, s{sRHO}, 1
s_lshr_b32 s{sT1}, s{sG}, 1
s_add_u32 s{sT0}, s{sT0}, s{sT1}
s_mul_i32 s{sU2}, s{sT0}, {TILE}
s_add_u32 s{sU2}, s{sU2}, {WS_KVT}
s_lshl_b32 s{sT0}, s{sT0}, 1
s_and_b32 s{sT1}, s{sRT}, 1
s_add_u32 s{sT0}, s{sT0}, s{sT1}
s_lshl_b32 s{sT0}, s{sT0}, 1
s_and_b32 s{sT2}, s{sG}, 1
s_add_u32 s{sT0}, s{sT0}, s{sT2}
s_lshl_b32 s{sU3}, s{sT0}, 7
s_add_u32 s{sU3}, s{sU3}, {WS_FKV}
v_and_b32 v8, 15, v{vLANE}
v_lshrrev_b32 v9, 4, v{vLANE}
s_waitcnt lgkmcnt(0)''')
for i in range(8):
    a(f'v_add_f32 v{ACC+i}, v{ACC+i}, v{K0+i}')
a(f'''v_cvt_pk_bf16_f32 v{K0}, v{ACC}, v{ACC+1}
v_cvt_pk_bf16_f32 v{K0+1}, v{ACC+2}, v{ACC+3}
v_cvt_pk_bf16_f32 v{K0+2}, v{ACC+4}, v{ACC+5}
v_cvt_pk_bf16_f32 v{K0+3}, v{ACC+6}, v{ACC+7}
s_cmp_eq_u32 s{sT2}, 1
s_cbranch_scc1 L_kv_finv
s_lshl_b32 s{sT1}, s{sT1}, 4
v_add_u32 v8, s{sT1}, v8
v_lshrrev_b32 v10, 1, v9
v_lshlrev_b32 v10, 9, v10
v_lshl_add_u32 v10, v8, 4, v10
v_and_b32 v11, 1, v9
v_lshl_add_u32 v10, v11, 3, v10
v_lshlrev_b32 v11, 3, v8
buffer_store_dwordx2 {v(K0,2)}, v10, s[{R_WS}:{R_WS+3}], s{sU2} offen sc1
s_mov_b64 exec, 0xffff
buffer_store_dwordx2 {v(K0+2,2)}, v11, s[{R_WS}:{R_WS+3}], s{sU2} offen offset:1024 sc1
s_mov_b64 exec, -1
v_mul_f32 v12, v{ACC}, v{ACC}
v_fmac_f32 v12, v{ACC+1}, v{ACC+1}
v_fmac_f32 v12, v{ACC+2}, v{ACC+2}
v_fmac_f32 v12, v{ACC+3}, v{ACC+3}
s_mov_b64 exec, 0xffff
v_fmac_f32 v12, v{ACC+4}, v{ACC+4}
v_fmac_f32 v12, v{ACC+5}, v{ACC+5}
v_fmac_f32 v12, v{ACC+6}, v{ACC+6}
v_fmac_f32 v12, v{ACC+7}, v{ACC+7}
s_mov_b64 exec, -1
v_mov_b32 v13, v12
s_nop 1
v_permlane16_swap_b32 v12, v13
v_add_f32 v12, v12, v13
v_mov_b32 v13, v12
s_nop 1
v_permlane32_swap_b32 v12, v13
v_add_f32 v12, v12, v13
s_branch L_kv_pub
L_kv_finv:
s_mul_i32 s{sT1}, s{sT1}, 672
s_add_u32 s{sU2}, s{sU2}, s{sT1}
s_add_u32 s{sU2}, s{sU2}, 1280
v_lshrrev_b32 v10, 1, v9
v_mul_u32_u24 v10, 336, v10
v_lshl_add_u32 v10, v8, 4, v10
v_and_b32 v11, 1, v9
v_lshl_add_u32 v10, v11, 3, v10
v_cmp_eq_u32 s[{sM0}:{sM0+1}], 4, v8
v_cmp_gt_u32 s[{sM1}:{sM1+1}], 5, v8
v_mov_b32 v13, 0x3f803f80
v_cndmask_b32 v{K0+2}, v{K0+2}, v13, s[{sM0}:{sM0+1}]
v_cndmask_b32 v{K0+3}, v{K0+3}, v13, s[{sM0}:{sM0+1}]
buffer_store_dwordx2 {v(K0,2)}, v10, s[{R_WS}:{R_WS+3}], s{sU2} offen sc1
s_mov_b64 exec, s[{sM1}:{sM1+1}]
buffer_store_dwordx2 {v(K0+2,2)}, v10, s[{R_WS}:{R_WS+3}], s{sU2} offen offset:256 sc1
s_mov_b64 exec, -1
v_cmp_gt_u32 s[{sM1}:{sM1+1}], 4, v8
v_and_b32 v12, 0x7fffffff, v{ACC}
v_and_b32 v13, 0x7fffffff, v{ACC+1}
v_max_u32 v12, v12, v13
v_and_b32 v13, 0x7fffffff, v{ACC+2}
v_and_b32 v14, 0x7fffffff, v{ACC+3}
v_max3_u32 v12, v12, v13, v14
s_mov_b64 exec, s[{sM1}:{sM1+1}]
v_and_b32 v13, 0x7fffffff, v{ACC+4}
v_and_b32 v14, 0x7fffffff, v{ACC+5}
v_max3_u32 v12, v12, v13, v14
v_and_b32 v13, 0x7fffffff, v{ACC+6}
v_and_b32 v14, 0x7fffffff, v{ACC+7}
v_max3_u32 v12, v12, v13, v14
s_mov_b64 exec, -1
v_mov_b32 v13, v12
s_nop 1
v_permlane16_swap_b32 v12, v13
v_max_u32 v12, v12, v13
v_mov_b32 v13, v12
s_nop 1
v_permlane32_swap_b32 v12, v13
v_max_u32 v12, v12, v13
L_kv_pub:''')
for r in (8, 4, 2, 1):
    a(f'v_max_u32_dpp v12, v12, v12 row_ror:{r} row_mask:0xf bank_mask:0xf')
a(f'''v_mov_b32 v13, v12
v_mov_b32 v12, s{sNON}
s_waitcnt vmcnt(0)
s_mov_b64 exec, 1
buffer_store_dwordx2 v[12:13], off, s[{R_WS}:{R_WS+3}], s{sU3} sc1
s_mov_b64 exec, -1''')
stamp(3)
a('s_branch L_A_q')

a('L_A_rb:')
x_scratch_addrs()
a('s_barrier')
stamp(1)
x_transpose(0 + (1 if (STAMPS or DBGT) else 0))
a('s_branch L_A_q')

a('L_A_duty:')
srd(R_B, P_WQ, 640 * 1280)
pattern_regs(vPAT, 'swap')
a('s_barrier')
x_loads()
a(f's_mul_i32 s{sU2}, s{sG}, 160')
for i in range(5):
    a(f'''s_add_u32 s{sT0}, s{sRANK}, {4*i}
    s_mul_i32 s{sT1}, s{sT0}, 40960
    s_add_u32 s{sT1}, s{sT1}, s{sU2}
    s_mul_i32 s{sT0}, s{sT0}, 5120''')
    for j in range(5):
        a(f'''s_add_u32 m0, s{sT0}, {L_WQ + 1024*j}
        s_nop 0
        buffer_load_dwordx4 v{vPAT+j}, s[{R_B}:{R_B+3}], s{sT1} offen lds''')
x_scratch_addrs()
stamp(1)
x_transpose(25 + (1 if (STAMPS or DBGT) else 0))
a('s_waitcnt vmcnt(0)')
arrive(M_D)

a('L_A_q:')
gemm_lanepart(vGA)
a(f'''s_mul_i32 s{sT0}, s{sKH}, 51200
s_add_u32 s{sT0}, s{sT0}, {L_WQ}
v_add_u32 v{vGA}, s{sT0}, v{vGA}''')
lds_wait(M_D, 4)
stamp(4)
gemm(XF, ACC, AB, lambda i: (vGA, 5120 * i))
arrive(M_E)
a(f'''v_and_b32 v{vT0}, 15, v{vLANE}
v_lshrrev_b32 v{vT1}, 4, v{vLANE}
v_mul_u32_u24 v{vT0}, 336, v{vT0}
v_lshl_add_u32 v{vT0}, v{vT1}, 4, v{vT0}
s_mul_i32 s{sT0}, s{sKH}, 21504
s_mul_i32 s{sT1}, s{sRT}, 5376
s_add_u32 s{sT0}, s{sT0}, s{sT1}
s_add_u32 s{sT0}, s{sT0}, {L_QP}
v_add_u32 v8, s{sT0}, v{vT0}''')
lds_wait(M_E, 8)
for ct in range(5):
    a(f'ds_write_b128 v8, {v(ACC+4*ct,4)} offset:{64*ct}')
a('s_waitcnt lgkmcnt(0)')
arrive(M_F)

SA, SB, OA, OB = 16, 32, 48, 64
KF = [80, 88]
VF = [96, 104]
QA1, QA2, QB1, QB2 = 112, 116, 120, 124
vIDX, vK, vK2, vV = 126, 127, 128, 129
vNA, vNB = 130, 131
vMA, vMB = 132, 133
sSLOW = sU5

a(f'''v_and_b32 v{vT0}, 31, v{vLANE}
v_lshrrev_b32 v{vT1}, 5, v{vLANE}
v_mul_u32_u24 v{vT0}, 336, v{vT0}
s_mul_i32 s{sT0}, s{sRT}, 80
s_add_u32 s{sT0}, s{sT0}, {L_QP}
v_add_u32 v9, s{sT0}, v{vT0}
v_lshl_add_u32 v8, v{vT1}, 5, v9
v_cmp_gt_u32 s[{sM0}:{sM0+1}], 32, v{vLANE}
s_mul_i32 s{sT0}, s{sKH}, {4*TILE}
s_add_u32 s{sT0}, s{sT0}, {L_SL0}
v_lshl_add_u32 v{vK}, v{vLANE}, 4, s{sT0}
v_and_b32 v{vT0}, 31, v{vLANE}
v_lshl_add_u32 v{vK2}, v{vT0}, 3, s{sT0}
v_min_u32 v{vT2}, 20, v{vT0}
v_subrev_u32 v{vT3}, 24, v{vT0}
v_cmp_le_u32 s[{sM1}:{sM1+1}], 28, v{vT0}
v_mul_u32_u24 v{vT1}, 336, v{vT1}
v_cndmask_b32 v{vT2}, v{vT2}, v{vT3}, s[{sM1}:{sM1+1}]
v_lshl_add_u32 v{vT1}, v{vT2}, 4, v{vT1}
v_add_u32 v{vV}, s{sT0}, v{vT1}
v_mov_b32 v{vIDX}, 0xdddddddd''')
lds_wait(M_F, 8)
QSCALE = 20 ** -0.5 * math.log2(math.e)
for rb, (Q1, Q2, vN) in enumerate(((QA1, QA2, vNA), (QB1, QB2, vNB))):
    o = 32 * 336 * rb
    T = 16 + 24 * rb
    a(f'''ds_read_b128 {v(T,4)}, v8 offset:{o}
    ds_read_b128 {v(T+4,4)}, v8 offset:{o+16}
    ds_read_b128 {v(T+8,4)}, v9 offset:{o+64}
    ds_read_b128 {v(T+12,4)}, v8 offset:{o+21504}
    ds_read_b128 {v(T+16,4)}, v8 offset:{o+21504+16}
    ds_read_b128 {v(T+20,4)}, v9 offset:{o+21504+64}''')
a(f's_mov_b32 s{sT0}, {f32(QSCALE)}')
for rb, (Q1, Q2, vN) in enumerate(((QA1, QA2, vNA), (QB1, QB2, vNB))):
    T = 16 + 24 * rb
    a(f's_waitcnt lgkmcnt({6 if rb == 0 else 0})')
    for i in range(12):
        a(f'v_add_f32 v{T+i}, v{T+i}, v{T+12+i}')
    for i in range(8):
        a(f'v_mul_f32 v{T+i}, s{sT0}, v{T+i}')
    for i in range(8, 12):
        a(f'v_mul_f32 v{T+i}, s{sT0}, v{T+i}')
        a(f'v_cndmask_b32 v{T+i}, 0, v{T+i}, s[{sM0}:{sM0+1}]')
    a(f'v_mul_f32 v{vN}, v{T}, v{T}')
    for i in range(1, 12):
        a(f'v_fmac_f32 v{vN}, v{T+i}, v{T+i}')
    for i in range(4):
        a(f'v_cvt_pk_bf16_f32 v{Q1+i}, v{T+2*i}, v{T+2*i+1}')
    for i in range(2):
        a(f'v_cvt_pk_bf16_f32 v{Q2+i}, v{T+8+2*i}, v{T+9+2*i}')
    a(f'''v_mov_b32 v{vT0}, v{vN}
    s_nop 1
    v_permlane32_swap_b32 v{vN}, v{vT0}
    v_add_f32 v{vN}, v{vN}, v{vT0}''')
a(f'v_max_u32 v{vNA}, v{vNA}, v{vNB}')
for i in range(16):
    a(f'v_mov_b32 v{OA+i}, 0')
    a(f'v_mov_b32 v{OB+i}, 0')
for i in range(8, 16):
    a(f'v_mov_b32 v{SB+i}, 0')
for i in range(4, 8):
    a(f'v_mov_b32 v{VF[1]+i}, 0')
stamp(5)
a('s_barrier')
stamp(6)


def rdK(buf, off):
    return [f'ds_read_b128 {v(KF[buf],4)}, v{vK} offset:{off}',
            f'ds_read_b64 {v(KF[buf]+4,2)}, v{vK2} offset:{off+1024}']


def rdV(buf, off):
    return [f'ds_read_b128 {v(VF[buf],4)}, v{vV} offset:{off+1280}',
            f'ds_read_b128 {v(VF[buf]+4,4)}, v{vV} offset:{off+1280+672}']


def qk1(S, kb, Q1):
    return f'v_mfma_f32_32x32x16_bf16 {v(S,16)}, {v(KF[kb],4)}, {v(Q1,4)}, 0'


def qk2(S, kb, Q2):
    return f'v_mfma_f32_32x32x8bf16_1k {v(S,16)}, {v(KF[kb]+4,2)}, {v(Q2,2)}, {v(S,16)}'


def pv(O, vb, j, S):
    return f'v_smfmac_f32_32x32x32_bf16 {v(O,16)}, {v(VF[vb]+4*j,4)}, {v(S+8*j,8)}, v{vIDX}'


def exps(S, i0, i1):
    return [f'v_exp_f32 v{S+i}, v{S+i}' for i in range(i0, i1)]


a(f'ds_read_b64 v[8:9], v{vMISC} offset:{M_KMAX}')
for x in rdK(0, 0) + rdV(0, 0):
    a(x)
a(f'''s_mov_b32 s{sT0}, {f32(3600.0)}
s_mov_b32 s{sT1}, {f32(2.0**40)}
s_waitcnt lgkmcnt(4)
v_mul_f32 v8, v8, v{vNA}
v_cmp_nle_f32 s[{sM0}:{sM0+1}], v8, s{sT0}
v_cmp_lt_u32 s[{sM1}:{sM1+1}], s{sT1}, v9
s_or_b64 vcc, s[{sM0}:{sM0+1}], s[{sM1}:{sM1+1}]''')
if FORCE_SLOW:
    a('s_branch L_slow')
else:
    a('s_cbranch_vccnz L_slow')
a(f'''s_mov_b32 s{sSLOW}, 0
s_waitcnt lgkmcnt(2)
{qk1(SA,0,QA1)}
{qk2(SA,0,QA2)}
s_mov_b32 s{sLOOP}, 4
s_waitcnt lgkmcnt(0)
s_setprio 2
s_nop 7''')
a('.p2align 6\nL_attn:')
for st in range(8):
    sl, i = st >> 2, st & 3
    cur = st & 1
    nxt = cur ^ 1
    nsl, ni = (sl, i + 1) if i < 3 else (sl ^ 1, 0)
    noff = nsl * SLOTD + ni * TILE
    L = [pv(OB, nxt, 1, SB)] + rdK(nxt, noff) + exps(SA, 0, 3) + [qk1(SB, cur, QB1)] + exps(SA, 3, 7) \
        + [qk2(SB, cur, QB2)] + exps(SA, 7, 11) + [pv(OA, cur, 0, SA)] + exps(SA, 11, 16) + rdV(nxt, noff) \
        + exps(SB, 0, 1) + [pv(OA, cur, 1, SA)] + exps(SB, 1, 4) + ['s_waitcnt lgkmcnt(2)', qk1(SA, nxt, QA1)] \
        + exps(SB, 4, 8) + [qk2(SA, nxt, QA2)] + exps(SB, 8, 12) + [pv(OB, cur, 0, SB)] + exps(SB, 12, 16) \
        + ['s_waitcnt lgkmcnt(0)']
    if i == 2:
        L += ['s_barrier', 's_setprio 3']
    else:
        L += ['s_setprio %d' % {3: 2, 0: 1, 1: 0}[i]]
    if st == 7:
        L += [f's_sub_u32 s{sLOOP}, s{sLOOP}, 1', f's_cmp_lg_u32 s{sLOOP}, 0', 's_cbranch_scc1 L_attn']
    for x in L:
        a(x)
a(pv(OB, 1, 1, SB))
a('s_setprio 0')
a('s_branch L_epi')

a('L_slow:')
a(f'''s_mov_b32 s{sSLOW}, 1
v_mov_b32 v{vMA}, 0xff7fffff
v_mov_b32 v{vMB}, 0xff7fffff
s_mov_b32 s{sLOOP}, 0
s_waitcnt lgkmcnt(0)
L_slow_tile:''')
for x in rdK(0, 0) + rdV(0, 0):
    a(x)
a('s_waitcnt lgkmcnt(0)')
for (S, O, Q1, Q2, vM) in ((SA, OA, QA1, QA2, vMA), (SB, OB, QB1, QB2, vMB)):
    a(qk1(S, 0, Q1))
    a(qk2(S, 0, Q2))
    a(f'v_max3_f32 v8, v{S}, v{S+1}, v{vM}')
    for i in range(2, 16, 2):
        a(f'v_max3_f32 v8, v{S+i}, v{S+i+1}, v8')
    a(f'''v_mov_b32 v9, v8
    s_nop 1
    v_permlane32_swap_b32 v8, v9
    v_max_f32 v8, v8, v9
    v_sub_f32 v9, v{vM}, v8
    v_exp_f32 v9, v9
    v_mov_b32 v{vM}, v8''')
    for i in range(16):
        a(f'v_sub_f32 v{S+i}, v{S+i}, v8')
    for i in range(16):
        a(f'v_mul_f32 v{O+i}, v{O+i}, v9')
    for x in exps(S, 0, 16):
        a(x)
    a(pv(O, 0, 0, S))
    a(pv(O, 0, 1, S))
a(f'''s_add_u32 s{sLOOP}, s{sLOOP}, 1
s_and_b32 s{sT0}, s{sLOOP}, 3
s_mov_b32 s{sT1}, {TILE}
s_cmp_lg_u32 s{sT0}, 0
s_cbranch_scc1 L_slow_adv
s_barrier
s_and_b32 s{sT0}, s{sLOOP}, 4
s_cmp_lg_u32 s{sT0}, 0
s_mov_b32 s{sT1}, {SLOTD - 3*TILE}
s_cselect_b32 s{sT1}, s{sT1}, {(-SLOTD - 3*TILE) & 0xffffffff}
L_slow_adv:
v_add_u32 v{vK}, s{sT1}, v{vK}
v_add_u32 v{vK2}, s{sT1}, v{vK2}
v_add_u32 v{vV}, s{sT1}, v{vV}
s_cmp_lt_u32 s{sLOOP}, 32
s_cbranch_scc1 L_slow_tile''')

a('L_epi:')
stamp(7)
a(f'''s_lshl_b32 s{sT0}, s{sRT}, 12
s_mul_i32 s{sT1}, s{sKH}, {SLOTD}
s_add_u32 s{sT1}, s{sT1}, s{sT0}
s_add_u32 s{sT1}, s{sT1}, {L_SL0}
v_lshl_add_u32 v8, v{vLANE}, 4, s{sT1}
s_xor_b32 s{sT2}, s{sKH}, 1
s_mul_i32 s{sT2}, s{sT2}, {SLOTD}
s_add_u32 s{sT2}, s{sT2}, s{sT0}
s_add_u32 s{sT2}, s{sT2}, {L_SL0}
v_lshl_add_u32 v9, v{vLANE}, 4, s{sT2}
s_lshl_b32 s{sT0}, s{sW}, 2
s_add_u32 s{sT1}, s{sT0}, {L_MISC + M_PE1}
v_mov_b32 v10, s{sT1}
s_xor_b32 s{sT1}, s{sT1}, 16
v_mov_b32 v11, s{sT1}
s_cmp_eq_u32 s{sKH}, 0
s_cbranch_scc1 L_e_k0''')
for i in range(16):
    a(f'v_swap_b32 v{OA+i}, v{OB+i}')
a(f'v_swap_b32 v{vMA}, v{vMB}')
a('L_e_k0:')
a(f'v_mov_b32 v{OB+13}, v{vMB}')
for q in range(4):
    a(f'ds_write_b128 v8, {v(OB+4*q,4)} offset:{1024*q}')
a(f'''s_waitcnt lgkmcnt(0)
s_mov_b64 exec, 1
ds_write_b32 v10, v{vONE}
s_mov_b64 exec, -1''')
a(f'''s_lshl_b32 s{sT0}, s{sG}, 2
s_add_u32 s{sT0}, s{sT0}, s{sRT}          ; H
s_lshr_b32 s{sT1}, s{sT0}, 3
s_mul_i32 s{sT1}, s{sT1}, 5               ; 5*(H>>3)
s_bfe_u32 s{sT2}, s{sT0}, 0x20001
s_add_u32 s{sT2}, s{sT2}, s{sT1}
s_lshl_b32 s{sT3}, s{sRHO}, 2
s_lshl_b32 s{sT4}, s{sKH}, 1
s_add_u32 s{sT3}, s{sT3}, s{sT4}
s_mul_i32 s{sT3}, s{sT3}, 20480
s_add_u32 s{sT3}, s{sT3}, {WS_OX}
s_lshl_b32 s{sT2}, s{sT2}, 10
s_add_u32 s{sU0}, s{sT2}, s{sT3}
s_and_b32 s{sT2}, s{sT0}, 1
s_lshl_b32 s{sT2}, s{sT2}, 9
s_add_u32 s{sU0}, s{sU0}, s{sT2}          ; + kq(=2*(H&1))*256
s_add_u32 s{sT1}, s{sT1}, 4
s_lshl_b32 s{sT1}, s{sT1}, 10
s_add_u32 s{sU1}, s{sT1}, s{sT3}
s_bfe_u32 s{sT1}, s{sT0}, 0x10002         ; (hh>>2)
s_lshl_b32 s{sT1}, s{sT1}, 9
s_add_u32 s{sU1}, s{sU1}, s{sT1}
s_and_b32 s{sT1}, s{sT0}, 1
s_lshl_b32 s{sT1}, s{sT1}, 8
s_add_u32 s{sU1}, s{sU1}, s{sT1}
s_bfe_u32 s{sT1}, s{sT0}, 0x10001
s_lshl_b32 s{sT1}, s{sT1}, 3
s_add_u32 s{sU1}, s{sU1}, s{sT1}
s_lshl_b32 s{sT1}, s{sRHO}, 1
s_add_u32 s{sT1}, s{sT1}, s{sKH}
s_lshl_b32 s{sT1}, s{sT1}, 5
s_add_u32 s{sT1}, s{sT1}, s{sT0}
s_lshl_b32 s{sU2}, s{sT1}, 7
s_add_u32 s{sU2}, s{sU2}, {WS_FO}
v_bfe_u32 v12, v{vLANE}, 4, 1
v_mul_u32_u24 v12, 20480, v12
v_and_b32 v13, 15, v{vLANE}
v_lshl_add_u32 v13, v13, 4, v12
v_lshrrev_b32 v12, 5, v{vLANE}
v_lshl_add_u32 v12, v12, 8, v13
v_cmp_gt_u32 s[{sM0}:{sM0+1}], 32, v{vLANE}''')
lds_wait_v(11, 1)
for q in range(4):
    a(f'ds_read_b128 {v(SA+4*q,4)}, v9 offset:{1024*q}')
a(f'''s_cmp_eq_u32 s{sSLOW}, 0
s_waitcnt lgkmcnt(0)
s_cbranch_scc1 L_e_fast
v_max_f32 v14, v{vMA}, v{SA+13}
v_sub_f32 v15, v{vMA}, v14
v_sub_f32 v14, v{SA+13}, v14
v_exp_f32 v15, v15
v_exp_f32 v14, v14
s_nop 0''')
for i in range(13):
    a(f'v_mul_f32 v{OA+i}, v{OA+i}, v15')
    a(f'v_mul_f32 v{SA+i}, v{SA+i}, v14')
a('L_e_fast:')
for i in range(13):
    a(f'v_add_f32 v{OA+i}, v{OA+i}, v{SA+i}')
a(f'''v_cndmask_b32 v14, v{OA+8}, v{OA+12}, s[{sM0}:{sM0+1}]
v_rcp_f32 v14, v14
s_nop 0''')
for i in range(12):
    a(f'v_mul_f32 v{OA+i}, v{OA+i}, v14')
for i in range(6):
    a(f'v_cvt_pk_bf16_f32 v{SA+i}, v{OA+2*i}, v{OA+2*i+1}')
a(f'''buffer_store_dwordx4 {v(SA,4)}, v12, s[{R_WS}:{R_WS+3}], s{sU0} offen sc1
s_mov_b64 exec, s[{sM0}:{sM0+1}]
buffer_store_dwordx2 {v(SA+4,2)}, v13, s[{R_WS}:{R_WS+3}], s{sU1} offen sc1
s_mov_b64 exec, -1''')
vOA = 120
vOL = 130
gemm_lanepart(vOL)
a(f's_cmp_eq_u32 s{sKH}, 0')
for i in range(10):
    a(f'''s_mov_b32 s{sT0}, {WO_UNIT[i]}
    s_cselect_b32 s{sT0}, s{sT0}, {WO_UNIT[10+i]}
    v_add_u32 v{vOA+i}, s{sT0}, v{vOL}''')
a(f'''v_mov_b32 v14, s{sNON}
s_waitcnt vmcnt(0)
s_mov_b64 exec, 1
buffer_store_dword v14, off, s[{R_WS}:{R_WS+3}], s{sU2} sc1
s_mov_b64 exec, -1''')
stamp(8)
a(f'''s_lshl_b32 s{sT1}, s{sRHO}, 1
s_lshr_b32 s{sT2}, s{sRT}, 1
s_add_u32 s{sT1}, s{sT1}, s{sT2}
s_lshl_b32 s{sT1}, s{sT1}, 1
s_add_u32 s{sT1}, s{sT1}, s{sKH}
s_lshl_b32 s{sT1}, s{sT1}, 11
s_add_u32 s{sT1}, s{sT1}, {WS_FO}
v_and_b32 v12, 15, v{vLANE}
v_lshlrev_b32 v12, 7, v12
s_lshl_b32 s{sT2}, s{sRHO}, 2
s_add_u32 s{sT2}, s{sT2}, s{sRT}
s_mul_i32 s{sT2}, s{sT2}, 20480
s_mul_i32 s{sT3}, s{sKH}, 10240
s_add_u32 s{sT2}, s{sT2}, s{sT3}
s_add_u32 s{sU0}, s{sT2}, {WS_OX}
v_lshlrev_b32 v13, 4, v{vLANE}
s_mov_b32 s{sSPIN}, {SPIN}
L_e_poll:
buffer_load_dword v14, v12, s[{R_WS}:{R_WS+3}], s{sT1} offen sc1
s_waitcnt vmcnt(0)
v_cmp_ne_u32 vcc, s{sNON}, v14
s_cbranch_vccz L_e_go
s_sub_u32 s{sSPIN}, s{sSPIN}, 1
s_cmp_lg_u32 s{sSPIN}, 0
s_cbranch_scc1 L_e_poll
L_e_go:''')
stamp(9)
for i in range(10):
    if i in (4, 8):
        a(f's_add_u32 s{sU0}, s{sU0}, 4096')
    a(f'buffer_load_dwordx4 {v(XF+4*i,4)}, v13, s[{R_WS}:{R_WS+3}], s{sU0} offen offset:{1024*(i&3)} sc1')
srd(R_C, P_OUT, 2048 * 2560)
gemm(XF, ACC, AB, lambda i: (vOA + i, 0), waits={i: f's_waitcnt vmcnt({9-i})' for i in range(10)})
stamp(10)
a(f'''s_lshl_b32 s{sT0}, s{sW}, 2
s_add_u32 s{sT1}, s{sT0}, {L_MISC + M_PE2}
v_mov_b32 v10, s{sT1}
s_xor_b32 s{sT1}, s{sT1}, 16
v_mov_b32 v11, s{sT1}
s_lshl_b32 s{sT0}, s{sRHO}, 6
s_lshl_b32 s{sT1}, s{sRT}, 4
s_add_u32 s{sT0}, s{sT0}, s{sT1}
s_mul_i32 s{sT0}, s{sT0}, 2560
s_mul_i32 s{sT1}, s{sG}, 160
s_add_u32 s{sU0}, s{sT0}, s{sT1}
v_and_b32 v12, 15, v{vLANE}
v_mul_u32_u24 v12, 2560, v12
v_lshrrev_b32 v13, 4, v{vLANE}
v_lshl_add_u32 v12, v13, 3, v12
s_cmp_eq_u32 s{sKH}, 0
s_cbranch_scc0 L_e_r1''')
for kh, (send, keep) in enumerate((((3, 4), (0, 1, 2)), ((0, 1, 2), (3, 4)))):
    if kh == 1:
        a('L_e_r1:')
    for n, ct in enumerate(send):
        a(f'ds_write_b128 v9, {v(ACC+4*ct,4)} offset:{1024*n}')
    a(f'''s_waitcnt lgkmcnt(0)
    s_mov_b64 exec, 1
    ds_write_b32 v10, v{vONE}
    s_mov_b64 exec, -1''')
    lds_wait_v(11, 1)
    for n, ct in enumerate(keep):
        a(f'ds_read_b128 {v(AB+4*n,4)}, v8 offset:{1024*n}')
    for n, ct in enumerate(keep):
        a(f's_waitcnt lgkmcnt({len(keep)-1-n})')
        for i in range(4):
            a(f'v_add_f32 v{ACC+4*ct+i}, v{ACC+4*ct+i}, v{AB+4*n+i}')
        a(f'''v_cvt_pk_bf16_f32 v{AB+4*n}, v{ACC+4*ct}, v{ACC+4*ct+1}
        v_cvt_pk_bf16_f32 v{AB+4*n+1}, v{ACC+4*ct+2}, v{ACC+4*ct+3}
        buffer_store_dwordx2 {v(AB+4*n,2)}, v12, s[{R_C}:{R_C+3}], s{sU0} offen offset:{32*ct}''')
    if STAMPS or DBGT:
        a('s_waitcnt vmcnt(0)')
    stamp(11)
    a('s_endpgm')

a('L_S:')
a(f'''s_sub_u32 s{sSI}, s{sW}, 8
s_mul_i32 s{sCH}, s{sRHO}, 20
s_lshl_b32 s{sT0}, s{sG}, 1
s_mul_i32 s{sT1}, s{sG}, 3
s_sub_u32 s{sT1}, s{sT1}, 4
s_cmp_lt_u32 s{sG}, 4
s_cselect_b32 s{sT0}, s{sT0}, s{sT1}
s_cselect_b32 s{sU4}, 2, 3
s_add_u32 s{sCH}, s{sCH}, s{sT0}
s_add_u32 s{sCH}, s{sCH}, s{sSI}
s_cmp_lt_u32 s{sSI}, s{sU4}
s_cbranch_scc1 L_kgen
s_cmp_eq_u32 s{sSI}, s{sU4}
s_cbranch_scc1 L_tu
buffer_load_dword v8, off, s[{R_WS}:{R_WS+3}], 0 sc1
s_barrier
s_waitcnt vmcnt(0)
v_readfirstlane_b32 s{sNON}, v8
s_add_u32 s{sNON}, s{sNON}, {NONCE_K}
s_branch L_poll_kv''')

UR = 16
a('L_tu:')
srd(R_A, P_U, 2048 * 1280)
a(f'buffer_load_dword v8, off, s[{R_WS}:{R_WS+3}], 0 sc1')
pattern_regs(56, 'lin')
a(f'''s_mul_i32 s{sT0}, s{sRHO}, {64*1280}
s_mul_i32 s{sT1}, s{sG}, 160
s_add_u32 s{sT0}, s{sT0}, s{sT1}
s_add_u32 s{sT1}, s{sT0}, 40960''')
for j in range(10):
    a(f'buffer_load_dwordx4 {v(UR+4*j,4)}, v{56+j%5}, s[{R_A}:{R_A+3}], s{sT0 if j < 5 else sT1} offen')
a(f'''s_barrier
s_cmp_lt_u32 s{sG}, 4
s_mov_b32 s{sU0}, {L_SL0 + 21504}
s_cselect_b32 s{sU0}, s{sU0}, {L_SL0}
s_cbranch_scc0 L_tu_go''')
lds_wait(M_X, 8)
a(f'''L_tu_go:
v_lshl_add_u32 v9, v{vLANE}, 4, s{sU0}
v_lshrrev_b32 v{vT0}, 4, v{vLANE}
v_bfe_u32 v{vT1}, v{vLANE}, 2, 2
v_lshl_add_u32 v{vT1}, v{vT0}, 3, v{vT1}
v_mul_u32_u24 v{vT1}, 160, v{vT1}
v_and_b32 v{vT2}, 3, v{vLANE}
v_lshl_add_u32 v{vT1}, v{vT2}, 3, v{vT1}
v_add_u32 v10, s{sU0}, v{vT1}
v_and_b32 v{vT1}, 15, v{vLANE}
v_lshlrev_b32 v{vT1}, 12, v{vT1}
v_lshl_add_u32 v11, v{vT0}, 4, v{vT1}
s_mul_i32 s{sT0}, s{sG}, {80*4096}
s_lshl_b32 s{sT1}, s{sRHO}, 7
s_add_u32 s{sT0}, s{sT0}, s{sT1}
s_add_u32 s{sU1}, s{sT0}, {WS_UT}
s_waitcnt vmcnt(10)
v_readfirstlane_b32 s{sNON}, v8
s_add_u32 s{sNON}, s{sNON}, {NONCE_K}''')
for j in range(10):
    a(f'''s_waitcnt vmcnt({9-j})
    ds_write_b128 v9, {v(UR+4*j,4)} offset:{1024*j}''')
for ct in range(5):
    for h in range(2):
        d = UR + 8 * ct + 4 * h
        for e in range(2):
            a(f'ds_read_b64_tr_b16 {v(d+2*e,2)}, v10 offset:{(32*h+4*e)*160 + 32*ct}')
    if ct == 2:
        pass
    a('s_waitcnt lgkmcnt(0)')
    for h in range(2):
        a(f'buffer_store_dwordx4 {v(UR+8*ct+4*h,4)}, v11, s[{R_WS}:{R_WS+3}], s{sU1} offen offset:{64*h} sc1')
    a(f's_add_u32 s{sU1}, s{sU1}, 65536')
lds_wait(M_X, 8)
a(f'''s_lshl_b32 s{sT0}, s{sRHO}, 3
s_add_u32 s{sT0}, s{sT0}, s{sG}
s_lshl_b32 s{sT0}, s{sT0}, 7
s_add_u32 s{sT0}, s{sT0}, {WS_FU}
v_mov_b32 v8, s{sNON}
s_waitcnt vmcnt(0)
s_mov_b64 exec, 1
buffer_store_dword v8, off, s[{R_WS}:{R_WS+3}], s{sT0} sc1
s_mov_b64 exec, -1''')
stamp(2)
a(f'''s_cmp_eq_u32 s{sSI}, 3
s_cbranch_scc1 L_poll_kv
s_barrier''')
for n in range(8):
    a('s_barrier')
a('s_branch L_yout')

a('L_poll_kv:')
vS_L16 = 60
a(f'''v_lshlrev_b32 v9, 7, v{vLANE}
v_lshlrev_b32 v{vS_L16}, 4, v{vLANE}
s_mov_b32 s{sT0}, {WS_FKV}
s_mov_b32 s{sT1}, {WS_FKV + 8192}
s_mov_b32 s{sT2}, {WS_FKV + 16384}
s_mov_b32 s{sT3}, {WS_FKV + 24576}
v_mov_b32 v8, s{sNON}
s_mov_b64 exec, 1
ds_write_b32 v{vMISC}, v8 offset:{M_NONCE}
s_mov_b64 exec, -1
s_mov_b32 s{sSPIN}, {SPIN}
L_pk:''')
for i in range(4):
    a(f'buffer_load_dwordx2 {v(16+2*i,2)}, v9, s[{R_WS}:{R_WS+3}], s{sT0+i} offen sc1')
a(f'''s_waitcnt vmcnt(0)
v_xor_b32 v10, s{sNON}, v16
v_xor_b32 v11, s{sNON}, v18
v_xor_b32 v12, s{sNON}, v20
v_xor_b32 v13, s{sNON}, v22
v_or_b32 v10, v10, v11
v_or3_b32 v10, v10, v12, v13
v_cmp_ne_u32 vcc, 0, v10
s_cbranch_vccz L_pk_go
s_sub_u32 s{sSPIN}, s{sSPIN}, 1
s_cmp_lg_u32 s{sSPIN}, 0
s_cbranch_scc1 L_pk
L_pk_go:''')
stamp(3)


def kv_dma(n):
    a(f'''s_add_u32 s{sT0}, s{sXCD}, {n}
    s_and_b32 s{sT0}, s{sT0}, 7
    s_mul_i32 s{sT0}, s{sT0}, {GROUP}
    s_add_u32 s{sT0}, s{sT0}, {WS_KVT}''')
    base = L_SL0 + (n & 1) * SLOTD
    for i in range(21):
        if i and i % 4 == 0:
            a(f's_add_u32 s{sT0}, s{sT0}, 4096')
        if i % 4 == 0:
            a(f's_mov_b32 m0, {base + 1024*i}\ns_nop 0')
        a(f'buffer_load_dwordx4 v{vS_L16}, s[{R_WS}:{R_WS+3}], s{sT0} offen offset:{1024*(i&3)} sc1 lds')


kv_dma(0)
a(f'''v_max_u32 v10, v17, v19
v_max3_u32 v10, v10, v21, v23''')
for r in (8, 4, 2):
    a(f'v_max_u32_dpp v10, v10, v10 row_ror:{r} row_mask:0xf bank_mask:0xf')
a(f'''v_mov_b32 v11, v10
s_nop 1
v_permlane16_swap_b32 v10, v11
v_max_u32 v10, v10, v11
v_mov_b32 v11, v10
s_nop 1
v_permlane32_swap_b32 v10, v11
v_max_u32 v10, v10, v11
v_lshl_add_u32 v11, v{vLANE}, 2, v{vMISC}
s_mov_b64 exec, 3
ds_write_b32 v11, v10 offset:{M_KMAX}
s_mov_b64 exec, -1''')
srd(R_A, P_WO, 640 * 1280)
vWN, vWL = 64, 70
pattern_regs(vWN, 'won')
pattern_regs(vWL, 'wol')
a(f's_mul_i32 s{sU0}, s{sG}, 160')


def wo_unit(st):
    sb, k = divmod(st, 5)
    row0 = 160 * sb + (40 * k if k < 4 else 0)
    pat = vWN if k < 4 else vWL
    a(f's_add_u32 s{sT0}, s{sU0}, {row0*1280}')
    for j in range(5):
        a(f'''s_mov_b32 m0, {WO_UNIT[st] + 1024*j}
        s_nop 0
        buffer_load_dwordx4 v{pat+j}, s[{R_A}:{R_A+3}], s{sT0} offen lds''')


a('s_waitcnt vmcnt(0) lgkmcnt(0)')
stamp(5)
a('s_barrier')
a('s_setprio 3')
kv_dma(1)
wo_unit(0)
a('s_waitcnt vmcnt(5)\ns_barrier')
plan = {0: [1, 2], 1: [3, 4], 2: [5, 6], 3: [7, 8], 4: [9, 10], 5: [11, 12], 6: [13, 14, 15, 16, 17, 18, 19]}
for n in range(7):
    if n + 2 < 8:
        kv_dma(n + 2)
    if n == 6:
        a(f'''s_lshl_b32 s{sT0}, s2, 7
        s_add_u32 s{sT0}, s{sT0}, {WS_FY}
        v_mov_b32 v8, s{sNON}
        s_mov_b64 exec, 1
        buffer_store_dword v8, off, s[{R_WS}:{R_WS+3}], s{sT0} sc1
        s_mov_b64 exec, -1''')
    for st in plan[n]:
        wo_unit(st)
    if n == 1:
        a(f'''s_cmp_lg_u32 s2, 0
        s_cbranch_scc1 L_noz
        s_mov_b32 s{sSPIN}, {SPIN}
        s_mov_b32 s{sT0}, {WS_FU}
        s_mov_b32 s{sT1}, {WS_FU + 8192}
        s_mov_b32 s{sT2}, {WS_FU + 16384}
        s_mov_b32 s{sT3}, {WS_FU + 24576}
        L_zp:''')
        for i in range(4):
            a(f'buffer_load_dword v{16+i}, v9, s[{R_WS}:{R_WS+3}], s{sT0+i} offen sc1')
        a(f'''s_waitcnt vmcnt(0)
        v_xor_b32 v10, s{sNON}, v16
        v_xor_b32 v11, s{sNON}, v17
        v_xor_b32 v12, s{sNON}, v18
        v_xor_b32 v13, s{sNON}, v19
        v_or_b32 v10, v10, v11
        v_or3_b32 v10, v10, v12, v13
        v_cmp_ne_u32 vcc, 0, v10
        s_cbranch_vccz L_zp_go
        s_sub_u32 s{sSPIN}, s{sSPIN}, 1
        s_cmp_lg_u32 s{sSPIN}, 0
        s_cbranch_scc1 L_zp
        L_zp_go:
        v_mov_b32 v8, s{sNON}
        s_mov_b64 exec, 1
        buffer_store_dword v8, off, s[{R_WS}:{R_WS+3}], 0 sc1
        s_mov_b64 exec, -1
        s_waitcnt vmcnt(0)
        L_noz:''')
    if n < 6:
        a(f's_waitcnt vmcnt({5*len(plan[n])})')
    else:
        a('s_waitcnt vmcnt(0)')
    a('s_barrier')
a('s_branch L_yout')

a('L_kgen:')
PRM = 16
vLDT, vDSK = 28, 29
srd(R_A, P_LA, 640 * 384)
srd(R_B, P_AI, 640 * 384)
srd(R_C, P_CR, 640 * 384)
srd(R_D, P_CI, 640 * 384)
srd(R_E, P_LDT, 1280)
srd(R_F, P_DS, 1280)
a(f'''v_lshlrev_b32 v8, 1, v{vLANE}
s_mul_i32 s{sT0}, s{sCH}, 384
s_lshl_b32 s{sT1}, s{sCH}, 1
buffer_load_ushort v{vLDT}, off, s[{R_E}:{R_E+3}], s{sT1}''')
for c in range(3):
    for i, r in enumerate((R_A, R_B, R_C, R_D)):
        a(f'buffer_load_ushort v{PRM+4*c+i}, v8, s[{r}:{r+3}], s{sT0} offen offset:{128*c}')
a(f'buffer_load_ushort v{vDSK}, off, s[{R_F}:{R_F+3}], s{sT1}')
a('s_barrier')
vDT, vXW, vXRA, vXRB = 30, 31, 32, 33
KACC = 36
FA, FB = 52, 84
Z1, W1, W2, Z256, Z512, Z768, Z1024, ZT, ZU = 116, 118, 120, 122, 124, 126, 128, 130, 132
XE, XO, Y0, Y2, Y4, Y6, YC, TM, TN = 134, 136, 138, 140, 142, 144, 146, 148, 150
PK = 152
LOG2E = math.log2(math.e)
L_HI = struct.unpack('<f', struct.pack('<f', LOG2E))[0]
L_LO = LOG2E - L_HI
a(f'''s_mul_i32 s{sU0}, s{sSI}, {AREA}
v_lshl_add_u32 v{vXW}, v{vLANE}, 2, s{sU0}
v_and_b32 v{vT0}, 31, v{vLANE}
v_lshrrev_b32 v{vT1}, 5, v{vLANE}
v_lshlrev_b32 v{vT1}, 4, v{vT1}
v_add_u32 v{vT1}, s{sU0}, v{vT1}
v_mov_b32 v{vT3}, 272
v_mad_u32_u24 v{vXRA}, v{vT0}, v{vT3}, v{vT1}
v_min_u32 v{vT0}, 20, v{vT0}
v_mad_u32_u24 v{vXRB}, v{vT0}, v{vT3}, v{vT1}
s_mov_b32 s{sU1}, {f32(L_HI)}
s_mov_b32 s{sU2}, {f32(L_LO)}
s_mov_b32 s{sU3}, {f32(math.log(2.0))}''')
for i in range(16):
    a(f'v_mov_b32 v{KACC+i}, 0')


def exp_bf16(dst, src, t0, t1):
    a(f'''v_mul_f32 v{t0}, s{sU1}, v{src}
    v_fma_f32 v{t1}, v{src}, s{sU1}, -v{t0}
    v_fmac_f32 v{t1}, s{sU2}, v{src}
    v_exp_f32 v{t0}, v{t0}
    v_mul_f32 v{t1}, s{sU3}, v{t1}
    v_fmac_f32 v{t0}, v{t0}, v{t1}
    v_cvt_pk_bf16_f32 v{dst}, v{t0}, v{t0}
    v_and_b32 v{dst}, 0xffff0000, v{dst}''')


def cmul(d, x, y, t):
    a(f'''v_pk_mul_f32 {v(t,2)}, {v(x,2)}, {v(y,2)} op_sel:[0,0] op_sel_hi:[0,1]
    v_pk_fma_f32 {v(d,2)}, {v(x,2)}, {v(y,2)}, {v(t,2)} op_sel:[1,1,0] op_sel_hi:[1,0,1] neg_lo:[1,0,0]''')


pkn = [0]


def putX(i, x):
    p = PK + (pkn[0] & 3)
    pkn[0] += 1
    a(f'''v_cvt_pk_bf16_f32 v{p}, v{x}, v{x+1}
    ds_write_b32 v{vXW}, v{p} offset:{272*i}''')


def putY(i, y):
    p = PK + (pkn[0] & 3)
    pkn[0] += 1
    a(f'''v_cvt_pk_bf16_f32 v{p}, v{y}, -v{y+1}
    ds_write_b32 v{vXW}, v{p} offset:{272*i}''')


a(f'''s_waitcnt vmcnt(13)
v_lshlrev_b32 v{vLDT}, 16, v{vLDT}''')
exp_bf16(vDT, vLDT, 8, 9)
a(f'''s_mov_b32 s{sLOOP}, 3
s_waitcnt vmcnt(0)''')
stamp(2)
a('L_kg_loop:')
a(f'''v_lshlrev_b32 v8, 16, v{PRM}
v_lshlrev_b32 v9, 16, v{PRM+1}
v_lshlrev_b32 v{Y0}, 16, v{PRM+2}
v_lshlrev_b32 v{Y0+1}, 16, v{PRM+3}''')
for i in range(8):
    a(f'v_mov_b32 v{PRM+i}, v{PRM+4+i}')
exp_bf16(10, 8, 11, 12)
a(f'''v_mul_f32 v10, v10, v{vDT}
v_mul_f32 v9, v9, v{vDT}
v_mul_f32 v10, {f32(-L_HI)}, v10
v_mul_f32 v9, 0.15915494, v9
v_add_f32 v8, v{vDT}, v{vDT}
v_mul_f32 v{Y0}, v{Y0}, v8
v_mul_f32 v{Y0+1}, v{Y0+1}, v8''')
for (dst, p) in ((W1, 8.0), (Z1, 1.0), (Z256, 256.0)):
    if p == 1.0:
        a(f'''v_exp_f32 v11, v10
        v_fract_f32 v12, v9''')
    else:
        a(f'''v_mul_f32 v11, {f32(p)}, v10
        v_mul_f32 v12, {f32(p)}, v9
        v_exp_f32 v11, v11
        v_fract_f32 v12, v12''')
    a(f'''v_cos_f32 v13, v12
    v_sin_f32 v14, v12
    s_nop 0
    v_mul_f32 v{dst}, v11, v13
    v_mul_f32 v{dst+1}, v11, v14''')
a(f'''v_mov_b32 v{PK}, 0x3f80
ds_write_b32 v{vXW}, v{PK}''')
pkn[0] = 1
cmul(W2, W1, W1, TM)
putX(1, W1)
cmul(XO, W1, W2, TN)
putX(2, W2)
cmul(XE, W2, W2, TM)
putX(3, XO)
for i in range(5, 32, 2):
    cmul(XO, XO, W2, TN)
    putX(i - 1, XE)
    if i + 1 < 32:
        cmul(XE, XE, W2, TM)
    putX(i, XO)
for t in range(8):
    a(f'ds_read_b128 {v(FA+4*t,4)}, v{vXRA} offset:{32*t}')
putY(0, Y0)
cmul(YC, Y0, Z1, TM)
cmul(Z512, Z256, Z256, TN)
putY(1, YC)
cmul(Y2, YC, Z1, TM)
cmul(Z768, Z512, Z256, TN)
putY(2, Y2)
cmul(YC, Y2, Z1, TM)
cmul(Z1024, Z512, Z512, TN)
putY(3, YC)
cmul(Y4, YC, Z1, TM)
cmul(ZT, Y0, Z256, TN)
putY(4, Y4)
cmul(YC, Y4, Z1, TM)
putY(8, ZT)
cmul(ZU, Y2, Z256, TN)
putY(5, YC)
cmul(Y6, YC, Z1, TM)
putY(9, ZU)
cmul(ZT, Y4, Z256, TN)
putY(6, Y6)
cmul(YC, Y6, Z1, TM)
putY(10, ZT)
cmul(ZU, Y6, Z256, TN)
putY(7, YC)
cmul(ZT, Y0, Z512, TM)
putY(11, ZU)
cmul(ZU, Y4, Z512, TN)
putY(12, ZT)
cmul(ZT, Y0, Z768, TM)
putY(13, ZU)
cmul(ZU, Y4, Z768, TN)
putY(14, ZT)
cmul(Y2, Y0, Z1024, TM)
putY(15, ZU)
cmul(ZT, Y2, Z256, TN)
putY(16, Y2)
cmul(ZU, Y2, Z512, TM)
putY(17, ZT)
cmul(ZT, Y2, Z768, TN)
putY(18, ZU)
cmul(ZU, Y2, Z1024, TM)
putY(19, ZT)
putY(20, ZU)
for t in range(8):
    a(f'ds_read_b128 {v(FB+4*t,4)}, v{vXRB} offset:{32*t}')
for t in range(8):
    a(f's_waitcnt lgkmcnt({7-t})')
    a(f'v_mfma_f32_32x32x16_bf16 {v(KACC,16)}, {v(FA+4*t,4)}, {v(FB+4*t,4)}, {v(KACC,16)}')
a(f'''s_sub_u32 s{sLOOP}, s{sLOOP}, 1
s_cmp_lg_u32 s{sLOOP}, 0
s_cbranch_scc1 L_kg_loop''')
stamp(3)
a(f'''v_and_b32 v{vT0}, 31, v{vLANE}
v_mul_u32_u24 v{vT0}, 144, v{vT0}
v_lshrrev_b32 v{vT1}, 5, v{vLANE}
v_lshl_add_u32 v{vT0}, v{vT1}, 4, v{vT0}
v_add_u32 v8, s{sU0}, v{vT0}
v_and_b32 v{vT0}, 1, v{vLANE}
v_lshrrev_b32 v{vT1}, 1, v{vLANE}
v_lshlrev_b32 v{vT1}, 2, v{vT1}
v_add_u32 v{vT1}, s{sU0}, v{vT1}
v_mov_b32 v{vT2}, 576
v_mad_u32_u24 v9, v{vT0}, v{vT2}, v{vT1}
v_mov_b32 v{vT2}, 288
v_mad_u32_u24 v10, v{vT0}, v{vT2}, v{vT1}
; seg2: (l>>5)*288 + (l&31)*4
v_lshrrev_b32 v{vT0}, 5, v{vLANE}
v_mul_u32_u24 v{vT0}, 288, v{vT0}
v_and_b32 v{vT1}, 31, v{vLANE}
v_lshl_add_u32 v{vT0}, v{vT1}, 2, v{vT0}
v_add_u32 v11, s{sU0}, v{vT0}
; seg3: (l>>4)*144 + (l&15)*8
v_lshrrev_b32 v{vT0}, 4, v{vLANE}
v_mul_u32_u24 v{vT0}, 144, v{vT0}
v_and_b32 v{vT1}, 15, v{vLANE}
v_lshl_add_u32 v{vT0}, v{vT1}, 3, v{vT0}
v_add_u32 v12, s{sU0}, v{vT0}
v_mov_b32 v13, s{sU0}''')
for q in range(4):
    a(f'ds_write_b128 v8, {v(KACC+4*q,4)} offset:{32*q}')
G = 52
k0, k1, k2, k3, km = G, G + 1, G + 2, G + 3, G + 4
a1, b1, c1, z1 = G + 5, G + 6, G + 7, G + 8
a2, b2, c2 = G + 9, G + 10, G + 11
a3, b3, c3 = G + 12, G + 13, G + 14
for i in range(4):
    a(f'ds_read_b32 v{k0+i}, v9 offset:{144*i}')
a(f'''ds_read_b32 v{a1}, v10 offset:{8*144}
ds_read_b32 v{b1}, v10 offset:{9*144}
ds_read_b32 v{c1}, v13 offset:{12*144}
ds_read_b32 v{z1}, v13 offset:{7*144 + 31*4}
ds_read_b32 v{a2}, v11 offset:{12*144}
ds_read_b32 v{b2}, v11 offset:{13*144}
ds_read_b32 v{c2}, v13 offset:{16*144}
ds_read_b64 {v(a3,2)}, v12 offset:{16*144}
ds_read_b32 v{c3}, v13 offset:{20*144}
v_lshlrev_b32 v{vT0}, 3, v{vLANE}
v_sub_u32 v8, s{sU0}, v{vT0}
v_add_u32 v8, {4*1022}, v8
v_lshlrev_b32 v{vT0}, 4, v{vLANE}
v_sub_u32 v9, s{sU0}, v{vT0}
v_add_u32 v9, {4*764}, v9
v_lshlrev_b32 v{vT0}, 5, v{vLANE}
v_sub_u32 v10, s{sU0}, v{vT0}
v_add_u32 v10, {4*504}, v10
v_add_u32 v11, 4160, v8
v_add_u32 v12, 4160, v9
v_add_u32 v14, 4160, v10
v_subrev_u32 v15, 512, v8
v_subrev_u32 v34, 512, v11
v_lshl_add_u32 v35, v{vLANE}, 2, s{sU0}
s_waitcnt lgkmcnt(0)
v_mov_b32_dpp v{km}, v{k3} wave_shr:1 row_mask:0xf bank_mask:0xf bound_ctrl:0
v_mov_b32_dpp v{c1}, v{a1} wave_shl:1 row_mask:0xf bank_mask:0xf
v_mov_b32_dpp v{c2}, v{a2} wave_shl:1 row_mask:0xf bank_mask:0xf
v_mov_b32_dpp v{c3}, v{a3} wave_shl:1 row_mask:0xf bank_mask:0xf
v_cmp_eq_u32 s[{sM0}:{sM0+1}], 0, v{vLANE}
s_nop 1
v_cndmask_b32 v{z1}, v{a1}, v{z1}, s[{sM0}:{sM0+1}]''')
E = 68


def pk(d, lo, hi):
    a(f'v_cvt_pk_bf16_f32 v{d}, v{lo}, v{hi}')


pk(E, k3, k2); pk(E + 1, k1, k0); pk(E + 2, k2, k1); pk(E + 3, k0, km)
a(f'''ds_write_b64 v8, {v(E,2)}
ds_write_b64 v11, {v(E+2,2)}''')
pk(E + 4, c1, b1); pk(E + 5, a1, a1); pk(E + 6, b1, a1); pk(E + 7, a1, z1)
a(f'''ds_write_b64 v15, {v(E+4,2)}
ds_write_b64 v34, {v(E+6,2)}''')
pk(E + 8, c2, c2); pk(E + 9, b2, b2); pk(E + 10, b2, a2); pk(E + 11, a2, a2)
pk(E + 12, c2, b2)
a(f'''v_mov_b32 v{E+13}, v{E+9}
v_mov_b32 v{E+14}, v{E+11}
v_mov_b32 v{E+15}, v{E+11}
ds_write_b128 v9, {v(E+8,4)}
ds_write_b128 v12, {v(E+12,4)}''')
F = E + 16
pk(F, c3, c3); pk(F + 2, b3, b3); pk(F + 5, b3, a3); pk(F + 6, a3, a3); pk(F + 9, c3, b3)
a(f'''v_mov_b32 v{F+1}, v{F}
v_mov_b32 v{F+3}, v{F+2}
v_mov_b32 v{F+4}, v{F+2}
v_mov_b32 v{F+7}, v{F+6}
v_mov_b32 v{F+8}, v{F}
v_mov_b32 v{F+10}, v{F+2}
v_mov_b32 v{F+11}, v{F+2}
v_mov_b32 v{F+12}, v{F+2}
v_mov_b32 v{F+13}, v{F+6}
v_mov_b32 v{F+14}, v{F+6}
v_mov_b32 v{F+15}, v{F+6}
ds_write_b128 v10, {v(F,4)}
ds_write_b128 v10, {v(F+4,4)} offset:16
ds_write_b128 v14, {v(F+8,4)}
ds_write_b128 v14, {v(F+12,4)} offset:16
v_mov_b32 v{vT0}, 0
s_mov_b64 exec, 0xffff
ds_write_b32 v35, v{vT0} offset:4096
ds_write_b32 v35, v{vT0} offset:{4096+4160}
s_mov_b64 exec, -1''')
vCA0, vCA1, vCB, vUE = 30, 31, 32, 33
a(f'''; A: area + copy*4160 + 4*(1023 - rho + 4 hi - 240) ; copy = 1 for even rows
v_bfe_u32 v{vT0}, v{vLANE}, 1, 4
v_lshrrev_b32 v{vT1}, 5, v{vLANE}
v_lshlrev_b32 v{vT1}, 2, v{vT1}
v_sub_u32 v{vT0}, v{vT1}, v{vT0}
v_add_u32 v{vT0}, 783, v{vT0}
v_lshlrev_b32 v{vT0}, 2, v{vT0}
v_and_b32 v{vT1}, 1, v{vLANE}
v_xor_b32 v{vT1}, 1, v{vT1}
v_mul_u32_u24 v{vT1}, 4160, v{vT1}
v_add3_u32 v{vCA0}, v{vT0}, v{vT1}, s{sU0}
v_subrev_u32 v{vCA1}, 2048, v{vCA0}
s_mul_i32 s{sU1}, s{sSI}, {UTA}
s_add_u32 s{sU1}, s{sU1}, {L_UTA}
v_and_b32 v{vT0}, 31, v{vLANE}
v_mul_u32_u24 v{vT0}, 80, v{vT0}
v_lshrrev_b32 v{vT1}, 5, v{vLANE}
v_lshl_add_u32 v{vT2}, v{vT1}, 4, v{vT0}
v_add_u32 v{vT2}, 80, v{vT2}
v_add_u32 v{vCB}, s{sU1}, v{vT2}
v_lshl_add_u32 v{vT2}, v{vT1}, 3, v{vT0}
v_add_u32 v{vT2}, 2560, v{vT2}
v_add_u32 v{vUE}, s{sU1}, v{vT2}
s_waitcnt lgkmcnt(0)''')
stamp(5)
a('s_barrier')
a('s_setprio 3')
a(f'''ds_read_b32 v8, v{vMISC} offset:{M_NONCE}
v_lshl_add_u32 v9, v{vLANE}, 4, s{sU1}
v_mov_b32 v36, 0
v_mov_b32 v37, 0
v_mov_b32 v38, 0
v_mov_b32 v39, 0
ds_write_b128 v9, v[36:39]
ds_write_b128 v9, v[36:39] offset:1024
ds_write_b128 v9, v[36:39] offset:2048
v_and_b32 v10, 31, v{vLANE}
v_lshlrev_b32 v10, 10, v10
s_lshl_b32 s{sT1}, s{sXCD}, 7
s_add_u32 s{sT1}, s{sT1}, {WS_FU}
s_waitcnt lgkmcnt(0)
v_readfirstlane_b32 s{sNON}, v8
s_mov_b32 s{sSPIN}, {SPIN}
L_pu:
buffer_load_dword v11, v10, s[{R_WS}:{R_WS+3}], s{sT1} offen sc1
s_waitcnt vmcnt(0)
v_cmp_ne_u32 vcc, s{sNON}, v11
s_cbranch_vccz L_pu_go
s_sub_u32 s{sSPIN}, s{sSPIN}, 1
s_cmp_lg_u32 s{sSPIN}, 0
s_cbranch_scc1 L_pu
L_pu_go:
s_lshl_b32 s{sT0}, s{sCH}, 12
s_add_u32 s{sT0}, s{sT0}, {WS_UT}''')
for j in range(5):
    a(f'''v_add_u32 v{vT0}, {64*j}, v{vLANE}
    v_mul_u32_u24 v{vT1}, 13108, v{vT0}
    v_lshrrev_b32 v{vT1}, 16, v{vT1}
    v_mul_u32_u24 v{vT2}, 5, v{vT1}
    v_sub_u32 v{vT0}, v{vT0}, v{vT2}
    v_min_u32 v{vT0}, 3, v{vT0}
    v_lshlrev_b32 v{vT1}, 6, v{vT1}
    v_lshl_add_u32 v{36+j}, v{vT0}, 4, v{vT1}
    s_add_u32 m0, s{sU1}, {2560 + 1024*j}
    s_nop 0
    buffer_load_dwordx4 v{36+j}, s[{R_WS}:{R_WS+3}], s{sT0} offen sc1 lds''')
N0, N1 = 36, 52
CF = 68
a('s_waitcnt vmcnt(0)')
for i in range(32):
    a(f'v_mov_b32 v{N0+i}, 0')
stamp(6)


def conv_reads(k):
    t, h = k >> 1, k & 1
    d = CF + 16 * (k & 1)
    off = 16 * (15 - (t & 15)) + 8 * h
    L = []
    if t == 16 and h == 0:
        L += [f'v_subrev_u32 v{vCA0}, 1024, v{vCA0}', f'v_subrev_u32 v{vCA1}, 1024, v{vCA1}']
    L += [f'ds_read2_b32 {v(d,2)}, v{vCA0} offset0:{off} offset1:{off+1}',
          f'ds_read2_b32 {v(d+2,2)}, v{vCA0} offset0:{off+2} offset1:{off+3}',
          f'ds_read_b128 {v(d+12,4)}, v{vCB} offset:{(31-t)*80 + 32*h + 2560}',
          f'ds_read_b128 {v(d+8,4)}, v{vCB} offset:{(31-t)*80 + 32*h}',
          f'ds_read2_b32 {v(d+4,2)}, v{vCA1} offset0:{off} offset1:{off+1}',
          f'ds_read2_b32 {v(d+6,2)}, v{vCA1} offset0:{off+2} offset1:{off+3}']
    return L


for x in conv_reads(0):
    a(x)
a('s_barrier')
cuts = [13, 26, 39, 52, 64]
k = 0
for n in range(5):
    while k < cuts[n]:
        d = CF + 16 * (k & 1)
        e = CF + 16 * ((k + 1) & 1)
        nx = conv_reads(k + 1) if k + 1 < 64 else []
        a('s_waitcnt lgkmcnt(0)')
        a(f'v_mfma_f32_32x32x16_bf16 {v(N1,16)}, {v(d,4)}, {v(d+12,4)}, {v(N1,16)}')
        for x in nx[:-3]:
            a(x)
        a(f'v_mfma_f32_32x32x16_bf16 {v(N0,16)}, {v(d,4)}, {v(d+8,4)}, {v(N0,16)}')
        for x in nx[-3:]:
            a(x)
        a(f'v_mfma_f32_32x32x16_bf16 {v(N1,16)}, {v(d+4,4)}, {v(d+8,4)}, {v(N1,16)}')
        k += 1
    a('s_barrier')
stamp(7)
a(f'v_lshlrev_b32 v{vDSK}, 16, v{vDSK}')
for b in range(2):
    for q in range(4):
        a(f'ds_read_b64 {v(CF+8*b+2*q,2)}, v{vUE} offset:{2560*b + 16*q}')
for b in range(2):
    N = (N0, N1)[b]
    for q in range(4):
        u = CF + 8 * b + 2 * q
        a(f's_waitcnt lgkmcnt({7 - 4*b - q})')
        a(f'''v_lshlrev_b32 v8, 16, v{u}
        v_and_b32 v9, 0xffff0000, v{u}
        v_lshlrev_b32 v10, 16, v{u+1}
        v_and_b32 v11, 0xffff0000, v{u+1}
        v_fmac_f32 v{N+4*q}, v8, v{vDSK}
        v_fmac_f32 v{N+4*q+1}, v9, v{vDSK}
        v_fmac_f32 v{N+4*q+2}, v10, v{vDSK}
        v_fmac_f32 v{N+4*q+3}, v11, v{vDSK}
        v_cvt_pk_bf16_f32 v{u}, v{N+4*q}, v{N+4*q+1}
        v_cvt_pk_bf16_f32 v{u+1}, v{N+4*q+2}, v{N+4*q+3}''')
for b in range(2):
    for q in range(4):
        a(f'ds_write_b64 v{vUE}, {v(CF+8*b+2*q,2)} offset:{2560*b + 16*q}')
a(f'''; read back: lane -> block (l>>2) + 16 jj, part l&3
v_lshrrev_b32 v{vT0}, 2, v{vLANE}
v_mul_u32_u24 v{vT0}, 80, v{vT0}
v_and_b32 v{vT1}, 3, v{vLANE}
v_lshl_add_u32 v{vT0}, v{vT1}, 4, v{vT0}
v_add_u32 v8, s{sU1}, v{vT0}
v_lshrrev_b32 v{vT0}, 3, v{vLANE}
v_mov_b32 v{vT2}, 81920
v_mul_lo_u32 v{vT0}, v{vT0}, v{vT2}
v_and_b32 v{vT1}, 7, v{vLANE}
v_lshl_add_u32 v9, v{vT1}, 4, v{vT0}
s_lshl_b32 s{sT0}, s{sCH}, 7
s_add_u32 s{sT0}, s{sT0}, {WS_YT}''')
for jj in range(4):
    a(f'ds_read_b128 {v(N0+4*jj,4)}, v8 offset:{2560 + 1280*jj}')
for jj in range(4):
    a(f'''s_waitcnt lgkmcnt({3-jj})
    buffer_store_dwordx4 {v(N0+4*jj,4)}, v9, s[{R_WS}:{R_WS+3}], s{sT0} offen sc1
    s_add_u32 s{sT0}, s{sT0}, {8*81920}''')
a('''s_waitcnt vmcnt(0)
s_barrier
s_barrier''')

a('L_yout:')
stamp(8)
srd(R_B, P_OUT, 2048 * 2560)
a(f'''ds_read_b32 v8, v{vMISC} offset:{M_NONCE}
v_and_b32 v10, 31, v{vLANE}
v_lshlrev_b32 v10, 10, v10
s_lshl_b32 s{sT1}, s{sG}, 7
s_add_u32 s{sT1}, s{sT1}, {WS_FY}
s_mul_i32 s{sU0}, s{sSI}, 3072
s_add_u32 s{sU0}, s{sU0}, {L_YS}
s_mul_i32 s{sT0}, s{sRHO}, 81920
s_mul_i32 s{sT2}, s{sG}, 10240
s_add_u32 s{sT0}, s{sT0}, s{sT2}
s_lshl_b32 s{sT2}, s{sSI}, 5
s_add_u32 s{sT0}, s{sT0}, s{sT2}
s_add_u32 s{sU1}, s{sT0}, {WS_YT}''')
for j in range(3):
    a(f'''v_add_u32 v{vT0}, {64*j}, v{vLANE}
    v_min_u32 v{vT0}, 159, v{vT0}
    v_lshrrev_b32 v{vT1}, 1, v{vT0}
    v_lshlrev_b32 v{vT1}, 7, v{vT1}
    v_and_b32 v{vT0}, 1, v{vT0}
    v_lshl_add_u32 v{16+j}, v{vT0}, 4, v{vT1}''')
a(f'''; tr-read address: priv + (8 o + r)*32 + 8 c, o = 4 b + kq (clamped to 9)
v_lshrrev_b32 v{vT0}, 4, v{vLANE}
v_bfe_u32 v{vT1}, v{vLANE}, 2, 2
v_and_b32 v{vT2}, 3, v{vLANE}
v_lshlrev_b32 v{vT2}, 3, v{vT2}
v_lshl_add_u32 v{vT2}, v{vT1}, 5, v{vT2}
v_add_u32 v{vT2}, s{sU0}, v{vT2}
v_lshl_add_u32 v20, v{vT0}, 8, v{vT2}
v_and_b32 v{vT3}, 1, v{vT0}
v_lshl_add_u32 v21, v{vT3}, 8, v{vT2}
v_and_b32 v{vT1}, 15, v{vLANE}
v_mul_u32_u24 v{vT1}, 2560, v{vT1}
v_lshl_add_u32 v22, v{vT0}, 4, v{vT1}
s_lshl_b32 s{sT0}, s{sRHO}, 6
s_lshl_b32 s{sT2}, s{sSI}, 4
s_add_u32 s{sT0}, s{sT0}, s{sT2}
s_mul_i32 s{sT0}, s{sT0}, 2560
s_mul_i32 s{sT2}, s{sG}, 160
s_add_u32 s{sT0}, s{sT0}, s{sT2}
s_add_u32 s{sU2}, s{sT0}, 1280
s_waitcnt lgkmcnt(0)
v_readfirstlane_b32 s{sNON}, v8
s_mov_b32 s{sSPIN}, {SPIN}
L_py:
buffer_load_dword v11, v10, s[{R_WS}:{R_WS+3}], s{sT1} offen sc1
s_waitcnt vmcnt(0)
v_cmp_ne_u32 vcc, s{sNON}, v11
s_cbranch_vccz L_py_go
s_sub_u32 s{sSPIN}, s{sSPIN}, 1
s_cmp_lg_u32 s{sSPIN}, 0
s_cbranch_scc1 L_py
L_py_go:''')
for j in range(3):
    a(f'''s_add_u32 m0, s{sU0}, {1024*j}
    s_nop 0
    buffer_load_dwordx4 v{16+j}, s[{R_WS}:{R_WS+3}], s{sU1} offen sc1 lds''')
a('s_waitcnt vmcnt(0)')
for b in range(3):
    r, o = (20, 1024 * b) if b < 2 else (21, 2048)
    a(f'''ds_read_b64_tr_b16 {v(24+4*b,2)}, v{r} offset:{o}
    ds_read_b64_tr_b16 {v(26+4*b,2)}, v{r} offset:{o+128}''')
a(f'''s_waitcnt lgkmcnt(0)
buffer_store_dwordx4 v[24:27], v22, s[{R_B}:{R_B+3}], s{sU2} offen
buffer_store_dwordx4 v[28:31], v22, s[{R_B}:{R_B+3}], s{sU2} offen offset:64
s_mov_b32 exec_hi, 0
buffer_store_dwordx4 v[32:35], v22, s[{R_B}:{R_B+3}], s{sU2} offen offset:128
s_mov_b64 exec, -1''')
if STAMPS:
    a('s_waitcnt vmcnt(0)')
stamp(9)
a('L_exit:\ns_endpgm')

lines, nins = hazard_pass(a.lines, verbose='-v' in sys.argv)
ref = open('cdna_kernels/%s.s.ref' % NAME).read().split('\n')
head = []
for l in ref:
    if l.startswith('; @launch'):
        break
    head.append(l)
txt = '\n'.join(head) + f'''
; @launch grid=(256,1,1) block=(768,1,1) lds={LDS_BYTES}
.amdgcn_target "amdgcn-amd-amdhsa--gfx950"
.text
.globl {NAME}_kernel
.p2align 8
.type {NAME}_kernel,@function
{NAME}_kernel:
''' + '\n'.join(lines) + f'''
.section .rodata,"a"
.p2align 6
.amdhsa_kernel {NAME}_kernel
  .amdhsa_next_free_vgpr 168
  .amdhsa_next_free_sgpr 100
  .amdhsa_accum_offset 168
  .amdhsa_group_segment_fixed_size 0
  .amdhsa_kernarg_size 120
  .amdhsa_user_sgpr_count 2
  .amdhsa_user_sgpr_kernarg_segment_ptr 1
  .amdhsa_system_sgpr_workgroup_id_x 1
  .amdhsa_float_denorm_mode_32 3
.end_amdhsa_kernel
'''
out = [x for x in sys.argv[1:] if not x.startswith('-')]
path = out[0] if out else 'cdna_kernels/%s.s' % NAME
open(path, 'w').write(txt)
print('wrote', path, len(lines), 'lines; hazard nops inserted:', nins)
```

```python
import sys, struct, math
sys.path.insert(0, 'work')
from asmlib import Asm, hazard_pass, v, s

NAME = 'concat_heads__grouped_kv_mqa__ssm_conv_s4d__prompt'
STAMPS = '--stamps' in sys.argv
FORCE_SLOW = '--slow' in sys.argv
DBGT = '--dbgt' in sys.argv


def f32(x):
    return '0x%08x' % struct.unpack('<I', struct.pack('<f', x))[0]


WS_Z = 0
WS_FKV = 4096
WS_FU = WS_FKV + 256 * 128
WS_FY = WS_FU + 256 * 128
WS_FO = 131072
WS_KVT = 0x80000
WS_UT = 0x100000
WS_YT = 0x400000
WS_OX = 0x700000
WS_ST = 0xA00000
WS_BYTES = 0x1000000
TILE = 2624
GROUP = 8 * TILE
NONCE_K = 0x9E3779B9

L_A = 0
AREA = 8704
L_WKV = 17408
L_SL0 = 26112
L_SCR = 43008
L_MISC = 59392
L_WQ = 61440
L_SL1 = 61440
L_QP = 61440
L_UTA = 82944
UTA = 7680
L_YS = 93184
LDS_BYTES = 163840
SLOTD = L_SL1 - L_SL0
WO_UNIT = [105984 + 5120 * i for i in range(11)] + [47616, 52736] + [5120 * i for i in range(5)] + [82944, 88064]
L_EX1 = L_SL0
M_W, M_D, M_E, M_F, M_X = 0, 4, 8, 12, 16
M_PKV = 20
M_KMAX, M_VMAX, M_NONCE = 40, 44, 36
M_PE1 = 64
M_PE2 = 96
SPIN = 400000

P_X, P_WQ, P_WK, P_WV, P_WO, P_U, P_LA, P_AI = 16, 18, 20, 22, 24, 26, 28, 30
P_CR, P_CI, P_LDT, P_DS, P_OUT, P_DBG, P_WS = 32, 34, 36, 38, 40, 42, 44
sW, sRHO, sG, sXCD, sNON = 3, 4, 5, 6, 7
sT0, sT1, sT2, sT3, sT4, sT5, sT6, sT7 = 8, 9, 10, 11, 12, 13, 14, 15
R_WS = 48
R_A, R_B, R_C, R_D, R_E, R_F = 52, 56, 60, 64, 68, 72
sRT, sKH, sSLOT, sRANK, sCH, sSI, sSPIN, sLOOP = 76, 77, 78, 79, 80, 81, 82, 83
sM0, sM1 = 84, 86
sU0, sU1, sU2, sU3, sU4, sU5 = 88, 89, 90, 91, 92, 93
sSTAMP = 94

a = Asm()


def srd(dst, ptr, nbytes):
    a(f'''s_mov_b32 s{dst}, s{ptr}
    s_mov_b32 s{dst+1}, s{ptr+1}
    s_mov_b32 s{dst+2}, {nbytes}
    s_mov_b32 s{dst+3}, 0x20000''')


vLANE, vMISC, vONE, vT0, vT1, vT2, vT3 = 1, 2, 3, 4, 5, 6, 7


def arrive(word, val_reg=vONE):
    a(f'''s_mov_b64 exec, 1
    ds_add_u32 v{vMISC}, v{val_reg} offset:{word}
    s_mov_b64 exec, -1''')


def lds_wait(word, target, tmp=vT0):
    L = a.label('w')
    D = a.label('wd')
    a(f'''s_mov_b32 s{sSPIN}, {SPIN}
    {L}:
    ds_read_b32 v{tmp}, v{vMISC} offset:{word}
    s_waitcnt lgkmcnt(0)
    v_readfirstlane_b32 s{sT7}, v{tmp}
    s_cmp_ge_u32 s{sT7}, {target}
    s_cbranch_scc1 {D}
    s_sub_u32 s{sSPIN}, s{sSPIN}, 1
    s_cmp_lg_u32 s{sSPIN}, 0
    s_cbranch_scc1 {L}
    {D}:''')


def lds_wait_v(vaddr, target, tmp=vT0):
    L = a.label('w')
    D = a.label('wd')
    a(f'''s_mov_b32 s{sSPIN}, {SPIN}
    {L}:
    ds_read_b32 v{tmp}, v{vaddr}
    s_waitcnt lgkmcnt(0)
    v_readfirstlane_b32 s{sT7}, v{tmp}
    s_cmp_ge_u32 s{sT7}, {target}
    s_cbranch_scc1 {D}
    s_sub_u32 s{sSPIN}, s{sSPIN}, 1
    s_cmp_lg_u32 s{sSPIN}, 0
    s_cbranch_scc1 {L}
    {D}:''')


def stamp(idx):
    if DBGT:
        sel = {0: 0, 1: 1, 4: 2, 5: 3, 6: 4, 7: 5, 9: 6, 11: 7}
        if idx not in sel:
            return
        lab = 'L_dbgskip%d' % len(a.lines)
        a(f'''s_cmp_lg_u32 s{sW}, 0
        s_cbranch_scc1 {lab}
        s_and_b32 s{sT7}, s2, 0x7f
        s_cmp_lg_u32 s{sT7}, 37
        s_cbranch_scc1 {lab}
        s_memrealtime s[{sSTAMP}:{sSTAMP+1}]
        s_mov_b32 s96, s{P_DBG}
        s_mov_b32 s97, s{P_DBG+1}
        s_mov_b32 s98, 256
        s_mov_b32 s99, 0x20000
        s_lshr_b32 s{sT7}, s2, 7
        s_lshl_b32 s{sT7}, s{sT7}, 5
        s_waitcnt lgkmcnt(0)
        v_mov_b32 v166, s{sSTAMP}
        s_mov_b64 exec, 1
        buffer_store_dword v166, off, s[96:99], s{sT7} offset:{4*sel[idx]}
        s_mov_b64 exec, -1
        s_waitcnt vmcnt(0)
        {lab}:''')
        return
    if not STAMPS:
        return
    a(f'''s_memrealtime s[{sSTAMP}:{sSTAMP+1}]
    s_memtime s[96:97]
    s_mul_i32 s{sT7}, s2, 12
    s_add_u32 s{sT7}, s{sT7}, s{sW}
    s_lshl_b32 s{sT7}, s{sT7}, 7
    s_add_u32 s{sT7}, s{sT7}, {WS_ST + idx*8}
    s_waitcnt lgkmcnt(0)
    v_mov_b32 v166, s{sSTAMP}
    v_mov_b32 v167, s96
    s_mov_b64 exec, 1
    buffer_store_dwordx2 v[166:167], off, s[{R_WS}:{R_WS+3}], s{sT7}
    s_mov_b64 exec, -1''')


def div10(dst_q, dst_r, src, tmp):
    a(f'''v_mul_u32_u24 v{dst_q}, 6554, v{src}
    v_lshrrev_b32 v{dst_q}, 16, v{dst_q}
    v_mul_u32_u24 v{tmp}, 10, v{dst_q}
    v_sub_u32 v{dst_r}, v{src}, v{tmp}''')


def pattern_regs(dst, kind):
    for j in range(5):
        a(f'v_add_u32 v{vT0}, {64*j}, v{vLANE}')
        div10(vT1, vT2, vT0, vT3)
        if kind == 'swap':
            a(f'''v_and_b32 v{vT3}, 0x13, v{vT1}
            v_bfe_u32 v{vT0}, v{vT1}, 2, 1
            v_lshl_or_b32 v{vT3}, v{vT0}, 3, v{vT3}
            v_bfe_u32 v{vT0}, v{vT1}, 3, 1
            v_lshl_or_b32 v{vT1}, v{vT0}, 2, v{vT3}''')
        elif kind == 'won':
            a(f'''v_lshrrev_b32 v{vT0}, 4, v{vT1}
            v_lshl_add_u32 v{vT1}, v{vT0}, 2, v{vT1}''')
        elif kind == 'wol':
            a(f'''v_lshrrev_b32 v{vT0}, 2, v{vT1}
            v_mul_u32_u24 v{vT0}, 20, v{vT0}
            v_and_b32 v{vT1}, 3, v{vT1}
            v_add3_u32 v{vT1}, v{vT0}, v{vT1}, 16''')
        a(f'''v_mul_u32_u24 v{vT1}, 1280, v{vT1}
        v_lshl_add_u32 v{dst+j}, v{vT2}, 4, v{vT1}''')


def gemm_lanepart(dst):
    a(f'''v_bfe_u32 v{vT0}, v{vLANE}, 5, 1
    v_lshlrev_b32 v{vT0}, 4, v{vT0}
    v_bfe_u32 v{vT1}, v{vLANE}, 4, 1
    v_lshl_add_u32 v{vT0}, v{vT1}, 2, v{vT0}
    v_bfe_u32 v{vT1}, v{vLANE}, 2, 2
    v_add_u32 v{vT0}, v{vT0}, v{vT1}
    v_mul_u32_u24 v{vT0}, 160, v{vT0}
    v_and_b32 v{vT1}, 3, v{vLANE}
    v_lshl_add_u32 v{dst}, v{vT1}, 3, v{vT0}''')


def gemm(xf, acc, ab, addr, waits=None):
    def reads(i, ct):
        r, base = addr(i)
        d = ab + 20 * (i & 1) + 4 * ct
        return [f'ds_read_b64_tr_b16 v[{d}:{d+1}], v{r} offset:{base + 32*ct}',
                f'ds_read_b64_tr_b16 v[{d+2}:{d+3}], v{r} offset:{base + 1280 + 32*ct}']
    for ct in range(5):
        for x in reads(0, ct):
            a(x)
    for i in range(10):
        if waits and i in waits:
            a(waits[i])
        for ct in range(5):
            n = 8 if i < 9 else 8 - 2 * ct
            a(f's_waitcnt lgkmcnt({n})')
            A = ab + 20 * (i & 1) + 4 * ct
            C = '0' if i == 0 else v(acc + 4 * ct, 4)
            a(f'v_mfma_f32_16x16x32_bf16 {v(acc+4*ct,4)}, {v(A,4)}, {v(xf+4*i,4)}, {C}')
            if i < 9:
                for x in reads(i + 1, ct):
                    a(x)


a(f'''s_cmp_ge_u32 s2, 256
s_cbranch_scc1 L_exit
s_load_dwordx16 s[16:31], s[0:1], 0
s_load_dwordx8 s[32:39], s[0:1], 64
s_load_dwordx4 s[40:43], s[0:1], 96
s_load_dwordx2 s[44:45], s[0:1], 112
v_lshrrev_b32 v{vT0}, 6, v0
v_and_b32 v{vLANE}, 63, v0
v_readfirstlane_b32 s{sW}, v{vT0}
s_and_b32 s{sXCD}, s2, 7
s_lshr_b32 s{sT0}, s2, 3
s_and_b32 s{sG}, s{sT0}, 7
s_lshr_b32 s{sT0}, s{sT0}, 3
s_lshl_b32 s{sRHO}, s{sXCD}, 2
s_add_u32 s{sRHO}, s{sRHO}, s{sT0}
v_mov_b32 v{vMISC}, {L_MISC}
v_mov_b32 v{vONE}, 1
v_mov_b32 v{vT1}, 0
v_lshl_add_u32 v{vT0}, v{vLANE}, 2, v{vMISC}
s_cmp_lg_u32 s{sW}, 0
s_cbranch_scc1 L_noinit
ds_write_b32 v{vT0}, v{vT1}
L_noinit:
s_waitcnt lgkmcnt(0)''')
srd(R_WS, P_WS, WS_BYTES)
stamp(0)
a(f'''s_cmp_ge_u32 s{sW}, 8
s_cbranch_scc1 L_S''')

XF = 16
ACC = 56
AB = 80
vXA0, vXA1 = 120, 121
vXR0, vXR1 = 122, 123
vPAT = 124
vGA = 129
vZ = 131
vKVA = 132

srd(R_A, P_X, 2048 * 1280)
a(f'''buffer_load_dword v{vZ}, off, s[{R_WS}:{R_WS+3}], 0 sc1
s_and_b32 s{sRT}, s{sW}, 3
s_lshr_b32 s{sKH}, s{sW}, 2
s_and_b32 s{sT0}, s{sRT}, 1
s_lshl_b32 s{sT1}, s{sKH}, 1
s_add_u32 s{sRANK}, s{sT0}, s{sT1}
v_lshrrev_b32 v{vT0}, 3, v{vLANE}
v_and_b32 v{vT1}, 7, v{vLANE}
v_mul_u32_u24 v{vT2}, 1280, v{vT0}
v_lshl_add_u32 v{vXA0}, v{vT1}, 4, v{vT2}
s_lshl_b32 s{sU0}, s{sRHO}, 6
s_lshl_b32 s{sT0}, s{sRT}, 4
s_add_u32 s{sU0}, s{sU0}, s{sT0}
s_mul_i32 s{sU0}, s{sU0}, 1280
s_mul_i32 s{sT0}, s{sKH}, 640
s_add_u32 s{sU0}, s{sU0}, s{sT0}
s_add_u32 s{sU1}, s{sU0}, 10240
s_lshr_b32 s{sT0}, s{sRT}, 1
s_bfe_u32 s{sT1}, s{sG}, 0x10001
s_cmp_eq_u32 s{sT0}, s{sT1}
s_cselect_b32 s{sT2}, 4, 0
s_add_u32 s{sSLOT}, s{sRANK}, s{sT2}''')


def x_loads():
    for i2 in range(5):
        a(f'buffer_load_dwordx4 {v(XF+8*i2,4)}, v{vXA0}, s[{R_A}:{R_A+3}], s{sU0} offen offset:{128*i2}')
        a(f'buffer_load_dwordx4 {v(XF+8*i2+4,4)}, v{vXA0}, s[{R_A}:{R_A+3}], s{sU1} offen offset:{128*i2}')


def x_scratch_addrs():
    a(f'''s_add_u32 s{sT0}, s{sSLOT}, 2
    s_and_b32 s{sT0}, s{sT0}, 7
    s_lshl_b32 s{sT0}, s{sT0}, 11
    s_add_u32 s{sT0}, s{sT0}, {L_SCR}
    v_lshrrev_b32 v{vT0}, 3, v{vLANE}
    v_and_b32 v{vT1}, 7, v{vLANE}
    v_lshrrev_b32 v{vT2}, 4, v{vLANE}
    v_xor_b32 v{vT1}, v{vT1}, v{vT2}
    v_lshlrev_b32 v{vT0}, 7, v{vT0}
    v_lshl_add_u32 v{vT0}, v{vT1}, 4, v{vT0}
    v_add_u32 v{vXA0}, s{sT0}, v{vT0}
    v_xor_b32 v{vXA1}, 64, v{vXA0}
    v_and_b32 v{vT0}, 15, v{vLANE}
    v_bfe_u32 v{vT1}, v{vLANE}, 1, 3
    v_xor_b32 v{vT1}, v{vT1}, v{vT2}
    v_lshlrev_b32 v{vT0}, 7, v{vT0}
    v_lshl_add_u32 v{vT0}, v{vT1}, 4, v{vT0}
    v_add_u32 v{vXR0}, s{sT0}, v{vT0}
    v_xor_b32 v{vXR1}, 64, v{vXR0}''')


def x_transpose(extra):
    for i2 in range(5):
        a(f's_waitcnt vmcnt({extra + 8 - 2*i2})')
        a(f'''ds_write_b128 v{vXA0}, {v(XF+8*i2,4)}
        ds_write_b128 v{vXA1}, {v(XF+8*i2+4,4)} offset:1024
        ds_read_b128 {v(XF+8*i2,4)}, v{vXR0}
        ds_read_b128 {v(XF+8*i2+4,4)}, v{vXR1}''')
    a(f'''v_readfirstlane_b32 s{sNON}, v{vZ}
    s_add_u32 s{sNON}, s{sNON}, {NONCE_K}
    s_waitcnt lgkmcnt(0)''')
    arrive(M_X)


a(f'''s_cmp_eq_u32 s{sT2}, 0
s_cbranch_scc1 L_A_duty''')
x_loads()
a(f'''s_cmp_ge_u32 s{sG}, 4
s_cbranch_scc1 L_A_rb''')
a(f'''s_and_b32 s{sT0}, s{sG}, 1
s_cmp_eq_u32 s{sT0}, 0
s_cselect_b32 s{R_B}, s{P_WK}, s{P_WV}
s_cselect_b32 s{R_B+1}, s{P_WK+1}, s{P_WV+1}
s_mov_b32 s{R_B+2}, 25600
s_mov_b32 s{R_B+3}, 0x20000
v_lshlrev_b32 v{vT0}, 4, v{vLANE}''')
for i in range(7):
    a(f'''s_add_u32 s{sT0}, s{sRANK}, {4*i}
    s_min_u32 s{sT0}, s{sT0}, 24
    s_lshl_b32 s{sT0}, s{sT0}, 10
    s_add_u32 m0, s{sT0}, {L_WKV}
    s_nop 0
    buffer_load_dwordx4 v{vT0}, s[{R_B}:{R_B+3}], s{sT0} offen lds''')
x_scratch_addrs()
a('s_barrier')
stamp(1)
x_transpose(7 + (1 if STAMPS else 0))
a('s_waitcnt vmcnt(0)')
arrive(M_W)
a(f'''v_lshrrev_b32 v{vT0}, 4, v{vLANE}
v_bfe_u32 v{vT1}, v{vLANE}, 2, 2
v_lshl_add_u32 v{vT0}, v{vT0}, 3, v{vT1}
v_mul_u32_u24 v{vT0}, 40, v{vT0}
v_and_b32 v{vT1}, 3, v{vLANE}
v_lshl_add_u32 v{vT0}, v{vT1}, 3, v{vT0}
s_mul_i32 s{sT0}, s{sKH}, 12800
s_add_u32 s{sT0}, s{sT0}, {L_WKV}
v_add_u32 v{vKVA}, s{sT0}, v{vT0}''')
lds_wait(M_W, 4)
stamp(2)


def kv_mfmas(isv):
    def reads(i):
        d = AB + 8 * (i % 3)
        return [f'ds_read_b64_tr_b16 v[{d+4*ct+2*e}:{d+4*ct+2*e+1}], v{vKVA} offset:{1280*i + 160*e + 32*ct}'
                for ct in range(2) for e in range(2)]
    for x in reads(0) + reads(1):
        a(x)
    for i in range(10):
        a(f's_waitcnt lgkmcnt({4 if i < 9 else 0})')
        d = AB + 8 * (i % 3)
        for ct in range(2):
            C = '0' if i == 0 else v(ACC + 4 * ct, 4)
            W, X = v(d + 4 * ct, 4), v(XF + 4 * i, 4)
            a(f'v_mfma_f32_16x16x32_bf16 {v(ACC+4*ct,4)}, {X if isv else W}, {W if isv else X}, {C}')
        if i + 2 < 10:
            for x in reads(i + 2):
                a(x)


a(f'''s_and_b32 s{sT0}, s{sG}, 1
s_cmp_eq_u32 s{sT0}, 1
s_cbranch_scc1 L_kv_v''')
kv_mfmas(False)
a('s_branch L_kv_red\nL_kv_v:')
kv_mfmas(True)
a('L_kv_red:')
a(f'''s_and_b32 s{sT0}, s{sRT}, 1
s_lshl_b32 s{sT0}, s{sT0}, 11
s_add_u32 s{sT0}, s{sT0}, {L_SCR}
v_lshl_add_u32 v{vT2}, v{vLANE}, 4, s{sT0}
s_lshl_b32 s{sT0}, s{sRT}, 2
s_add_u32 s{sT0}, s{sT0}, {L_MISC + M_PKV}
v_mov_b32 v{vT3}, s{sT0}
s_cmp_eq_u32 s{sKH}, 0
s_cbranch_scc1 L_kv_fin
ds_write_b128 v{vT2}, {v(ACC,4)}
ds_write_b128 v{vT2}, {v(ACC+4,4)} offset:1024
s_waitcnt lgkmcnt(0)
s_mov_b64 exec, 1
ds_write_b32 v{vT3}, v{vONE}
s_mov_b64 exec, -1
s_branch L_A_q
L_kv_fin:''')
lds_wait_v(vT3, 1)
K0 = AB
a(f'''ds_read_b128 {v(K0,4)}, v{vT2}
ds_read_b128 {v(K0+4,4)}, v{vT2} offset:1024
s_lshl_b32 s{sT0}, s{sRHO}, 1
s_lshr_b32 s{sT1}, s{sG}, 1
s_add_u32 s{sT0}, s{sT0}, s{sT1}
s_mul_i32 s{sU2}, s{sT0}, {TILE}
s_add_u32 s{sU2}, s{sU2}, {WS_KVT}
s_lshl_b32 s{sT0}, s{sT0}, 1
s_and_b32 s{sT1}, s{sRT}, 1
s_add_u32 s{sT0}, s{sT0}, s{sT1}
s_lshl_b32 s{sT0}, s{sT0}, 1
s_and_b32 s{sT2}, s{sG}, 1
s_add_u32 s{sT0}, s{sT0}, s{sT2}
s_lshl_b32 s{sU3}, s{sT0}, 7
s_add_u32 s{sU3}, s{sU3}, {WS_FKV}
v_and_b32 v8, 15, v{vLANE}
v_lshrrev_b32 v9, 4, v{vLANE}
s_waitcnt lgkmcnt(0)''')
for i in range(8):
    a(f'v_add_f32 v{ACC+i}, v{ACC+i}, v{K0+i}')
a(f'''v_cvt_pk_bf16_f32 v{K0}, v{ACC}, v{ACC+1}
v_cvt_pk_bf16_f32 v{K0+1}, v{ACC+2}, v{ACC+3}
v_cvt_pk_bf16_f32 v{K0+2}, v{ACC+4}, v{ACC+5}
v_cvt_pk_bf16_f32 v{K0+3}, v{ACC+6}, v{ACC+7}
s_cmp_eq_u32 s{sT2}, 1
s_cbranch_scc1 L_kv_finv
s_lshl_b32 s{sT1}, s{sT1}, 4
v_add_u32 v8, s{sT1}, v8
v_lshrrev_b32 v10, 1, v9
v_lshlrev_b32 v10, 9, v10
v_lshl_add_u32 v10, v8, 4, v10
v_and_b32 v11, 1, v9
v_lshl_add_u32 v10, v11, 3, v10
v_lshlrev_b32 v11, 3, v8
buffer_store_dwordx2 {v(K0,2)}, v10, s[{R_WS}:{R_WS+3}], s{sU2} offen sc1
s_mov_b64 exec, 0xffff
buffer_store_dwordx2 {v(K0+2,2)}, v11, s[{R_WS}:{R_WS+3}], s{sU2} offen offset:1024 sc1
s_mov_b64 exec, -1
v_mul_f32 v12, v{ACC}, v{ACC}
v_fmac_f32 v12, v{ACC+1}, v{ACC+1}
v_fmac_f32 v12, v{ACC+2}, v{ACC+2}
v_fmac_f32 v12, v{ACC+3}, v{ACC+3}
s_mov_b64 exec, 0xffff
v_fmac_f32 v12, v{ACC+4}, v{ACC+4}
v_fmac_f32 v12, v{ACC+5}, v{ACC+5}
v_fmac_f32 v12, v{ACC+6}, v{ACC+6}
v_fmac_f32 v12, v{ACC+7}, v{ACC+7}
s_mov_b64 exec, -1
v_mov_b32 v13, v12
s_nop 1
v_permlane16_swap_b32 v12, v13
v_add_f32 v12, v12, v13
v_mov_b32 v13, v12
s_nop 1
v_permlane32_swap_b32 v12, v13
v_add_f32 v12, v12, v13
s_branch L_kv_pub
L_kv_finv:
s_mul_i32 s{sT1}, s{sT1}, 672
s_add_u32 s{sU2}, s{sU2}, s{sT1}
s_add_u32 s{sU2}, s{sU2}, 1280
v_lshrrev_b32 v10, 1, v9
v_mul_u32_u24 v10, 336, v10
v_lshl_add_u32 v10, v8, 4, v10
v_and_b32 v11, 1, v9
v_lshl_add_u32 v10, v11, 3, v10
v_cmp_eq_u32 s[{sM0}:{sM0+1}], 4, v8
v_cmp_gt_u32 s[{sM1}:{sM1+1}], 5, v8
v_mov_b32 v13, 0x3f803f80
v_cndmask_b32 v{K0+2}, v{K0+2}, v13, s[{sM0}:{sM0+1}]
v_cndmask_b32 v{K0+3}, v{K0+3}, v13, s[{sM0}:{sM0+1}]
buffer_store_dwordx2 {v(K0,2)}, v10, s[{R_WS}:{R_WS+3}], s{sU2} offen sc1
s_mov_b64 exec, s[{sM1}:{sM1+1}]
buffer_store_dwordx2 {v(K0+2,2)}, v10, s[{R_WS}:{R_WS+3}], s{sU2} offen offset:256 sc1
s_mov_b64 exec, -1
v_cmp_gt_u32 s[{sM1}:{sM1+1}], 4, v8
v_and_b32 v12, 0x7fffffff, v{ACC}
v_and_b32 v13, 0x7fffffff, v{ACC+1}
v_max_u32 v12, v12, v13
v_and_b32 v13, 0x7fffffff, v{ACC+2}
v_and_b32 v14, 0x7fffffff, v{ACC+3}
v_max3_u32 v12, v12, v13, v14
s_mov_b64 exec, s[{sM1}:{sM1+1}]
v_and_b32 v13, 0x7fffffff, v{ACC+4}
v_and_b32 v14, 0x7fffffff, v{ACC+5}
v_max3_u32 v12, v12, v13, v14
v_and_b32 v13, 0x7fffffff, v{ACC+6}
v_and_b32 v14, 0x7fffffff, v{ACC+7}
v_max3_u32 v12, v12, v13, v14
s_mov_b64 exec, -1
v_mov_b32 v13, v12
s_nop 1
v_permlane16_swap_b32 v12, v13
v_max_u32 v12, v12, v13
v_mov_b32 v13, v12
s_nop 1
v_permlane32_swap_b32 v12, v13
v_max_u32 v12, v12, v13
L_kv_pub:''')
for r in (8, 4, 2, 1):
    a(f'v_max_u32_dpp v12, v12, v12 row_ror:{r} row_mask:0xf bank_mask:0xf')
a(f'''v_mov_b32 v13, v12
v_mov_b32 v12, s{sNON}
s_waitcnt vmcnt(0)
s_mov_b64 exec, 1
buffer_store_dwordx2 v[12:13], off, s[{R_WS}:{R_WS+3}], s{sU3} sc1
s_mov_b64 exec, -1''')
stamp(3)
a('s_branch L_A_q')

a('L_A_rb:')
x_scratch_addrs()
a('s_barrier')
stamp(1)
x_transpose(0 + (1 if STAMPS else 0))
a('s_branch L_A_q')

a('L_A_duty:')
srd(R_B, P_WQ, 640 * 1280)
pattern_regs(vPAT, 'swap')
a('s_barrier')
x_loads()
a(f's_mul_i32 s{sU2}, s{sG}, 160')
for i in range(5):
    a(f'''s_add_u32 s{sT0}, s{sRANK}, {4*i}
    s_mul_i32 s{sT1}, s{sT0}, 40960
    s_add_u32 s{sT1}, s{sT1}, s{sU2}
    s_mul_i32 s{sT0}, s{sT0}, 5120''')
    for j in range(5):
        a(f'''s_add_u32 m0, s{sT0}, {L_WQ + 1024*j}
        s_nop 0
        buffer_load_dwordx4 v{vPAT+j}, s[{R_B}:{R_B+3}], s{sT1} offen lds''')
x_scratch_addrs()
stamp(1)
x_transpose(25 + (1 if STAMPS else 0))
a('s_waitcnt vmcnt(0)')
arrive(M_D)

a('L_A_q:')
gemm_lanepart(vGA)
a(f'''s_mul_i32 s{sT0}, s{sKH}, 51200
s_add_u32 s{sT0}, s{sT0}, {L_WQ}
v_add_u32 v{vGA}, s{sT0}, v{vGA}''')
lds_wait(M_D, 4)
stamp(4)
gemm(XF, ACC, AB, lambda i: (vGA, 5120 * i))
arrive(M_E)
a(f'''v_and_b32 v{vT0}, 15, v{vLANE}
v_lshrrev_b32 v{vT1}, 4, v{vLANE}
v_mul_u32_u24 v{vT0}, 336, v{vT0}
v_lshl_add_u32 v{vT0}, v{vT1}, 4, v{vT0}
s_mul_i32 s{sT0}, s{sKH}, 21504
s_mul_i32 s{sT1}, s{sRT}, 5376
s_add_u32 s{sT0}, s{sT0}, s{sT1}
s_add_u32 s{sT0}, s{sT0}, {L_QP}
v_add_u32 v8, s{sT0}, v{vT0}''')
lds_wait(M_E, 8)
for ct in range(5):
    a(f'ds_write_b128 v8, {v(ACC+4*ct,4)} offset:{64*ct}')
a('s_waitcnt lgkmcnt(0)')
arrive(M_F)

SA, SB, OA, OB = 16, 32, 48, 64
KF = [80, 88]
VF = [96, 104]
QA1, QA2, QB1, QB2 = 112, 116, 120, 124
vIDX, vK, vK2, vV = 126, 127, 128, 129
vNA, vNB = 130, 131
vMA, vMB = 132, 133
sSLOW = sU5

a(f'''v_and_b32 v{vT0}, 31, v{vLANE}
v_lshrrev_b32 v{vT1}, 5, v{vLANE}
v_mul_u32_u24 v{vT0}, 336, v{vT0}
s_mul_i32 s{sT0}, s{sRT}, 80
s_add_u32 s{sT0}, s{sT0}, {L_QP}
v_add_u32 v9, s{sT0}, v{vT0}
v_lshl_add_u32 v8, v{vT1}, 5, v9
v_cmp_gt_u32 s[{sM0}:{sM0+1}], 32, v{vLANE}
s_mul_i32 s{sT0}, s{sKH}, {4*TILE}
s_add_u32 s{sT0}, s{sT0}, {L_SL0}
v_lshl_add_u32 v{vK}, v{vLANE}, 4, s{sT0}
v_and_b32 v{vT0}, 31, v{vLANE}
v_lshl_add_u32 v{vK2}, v{vT0}, 3, s{sT0}
v_min_u32 v{vT2}, 20, v{vT0}
v_subrev_u32 v{vT3}, 24, v{vT0}
v_cmp_le_u32 s[{sM1}:{sM1+1}], 28, v{vT0}
v_mul_u32_u24 v{vT1}, 336, v{vT1}
v_cndmask_b32 v{vT2}, v{vT2}, v{vT3}, s[{sM1}:{sM1+1}]
v_lshl_add_u32 v{vT1}, v{vT2}, 4, v{vT1}
v_add_u32 v{vV}, s{sT0}, v{vT1}
v_mov_b32 v{vIDX}, 0xdddddddd''')
lds_wait(M_F, 8)
QSCALE = 20 ** -0.5 * math.log2(math.e)
for rb, (Q1, Q2, vN) in enumerate(((QA1, QA2, vNA), (QB1, QB2, vNB))):
    o = 32 * 336 * rb
    T = 16 + 24 * rb
    a(f'''ds_read_b128 {v(T,4)}, v8 offset:{o}
    ds_read_b128 {v(T+4,4)}, v8 offset:{o+16}
    ds_read_b128 {v(T+8,4)}, v9 offset:{o+64}
    ds_read_b128 {v(T+12,4)}, v8 offset:{o+21504}
    ds_read_b128 {v(T+16,4)}, v8 offset:{o+21504+16}
    ds_read_b128 {v(T+20,4)}, v9 offset:{o+21504+64}''')
a(f's_mov_b32 s{sT0}, {f32(QSCALE)}')
for rb, (Q1, Q2, vN) in enumerate(((QA1, QA2, vNA), (QB1, QB2, vNB))):
    T = 16 + 24 * rb
    a(f's_waitcnt lgkmcnt({6 if rb == 0 else 0})')
    for i in range(12):
        a(f'v_add_f32 v{T+i}, v{T+i}, v{T+12+i}')
    for i in range(8):
        a(f'v_mul_f32 v{T+i}, s{sT0}, v{T+i}')
    for i in range(8, 12):
        a(f'v_mul_f32 v{T+i}, s{sT0}, v{T+i}')
        a(f'v_cndmask_b32 v{T+i}, 0, v{T+i}, s[{sM0}:{sM0+1}]')
    a(f'v_mul_f32 v{vN}, v{T}, v{T}')
    for i in range(1, 12):
        a(f'v_fmac_f32 v{vN}, v{T+i}, v{T+i}')
    for i in range(4):
        a(f'v_cvt_pk_bf16_f32 v{Q1+i}, v{T+2*i}, v{T+2*i+1}')
    for i in range(2):
        a(f'v_cvt_pk_bf16_f32 v{Q2+i}, v{T+8+2*i}, v{T+9+2*i}')
    a(f'''v_mov_b32 v{vT0}, v{vN}
    s_nop 1
    v_permlane32_swap_b32 v{vN}, v{vT0}
    v_add_f32 v{vN}, v{vN}, v{vT0}''')
a(f'v_max_u32 v{vNA}, v{vNA}, v{vNB}')
for i in range(16):
    a(f'v_mov_b32 v{OA+i}, 0')
    a(f'v_mov_b32 v{OB+i}, 0')
for i in range(8, 16):
    a(f'v_mov_b32 v{SB+i}, 0')
for i in range(4, 8):
    a(f'v_mov_b32 v{VF[1]+i}, 0')
stamp(5)
a('s_barrier')
stamp(6)


def rdK(buf, off):
    return [f'ds_read_b128 {v(KF[buf],4)}, v{vK} offset:{off}',
            f'ds_read_b64 {v(KF[buf]+4,2)}, v{vK2} offset:{off+1024}']


def rdV(buf, off):
    return [f'ds_read_b128 {v(VF[buf],4)}, v{vV} offset:{off+1280}',
            f'ds_read_b128 {v(VF[buf]+4,4)}, v{vV} offset:{off+1280+672}']


def qk1(S, kb, Q1):
    return f'v_mfma_f32_32x32x16_bf16 {v(S,16)}, {v(KF[kb],4)}, {v(Q1,4)}, 0'


def qk2(S, kb, Q2):
    return f'v_mfma_f32_32x32x8bf16_1k {v(S,16)}, {v(KF[kb]+4,2)}, {v(Q2,2)}, {v(S,16)}'


def pv(O, vb, j, S):
    return f'v_smfmac_f32_32x32x32_bf16 {v(O,16)}, {v(VF[vb]+4*j,4)}, {v(S+8*j,8)}, v{vIDX}'


def exps(S, i0, i1):
    return [f'v_exp_f32 v{S+i}, v{S+i}' for i in range(i0, i1)]


a(f'ds_read_b64 v[8:9], v{vMISC} offset:{M_KMAX}')
for x in rdK(0, 0) + rdV(0, 0):
    a(x)
a(f'''s_mov_b32 s{sT0}, {f32(3600.0)}
s_mov_b32 s{sT1}, {f32(2.0**40)}
s_waitcnt lgkmcnt(4)
v_mul_f32 v8, v8, v{vNA}
v_cmp_nle_f32 s[{sM0}:{sM0+1}], v8, s{sT0}
v_cmp_lt_u32 s[{sM1}:{sM1+1}], s{sT1}, v9
s_or_b64 vcc, s[{sM0}:{sM0+1}], s[{sM1}:{sM1+1}]''')
if FORCE_SLOW:
    a('s_branch L_slow')
else:
    a('s_cbranch_vccnz L_slow')
a(f'''s_mov_b32 s{sSLOW}, 0
s_waitcnt lgkmcnt(2)
{qk1(SA,0,QA1)}
{qk2(SA,0,QA2)}
s_mov_b32 s{sLOOP}, 4
s_waitcnt lgkmcnt(0)
s_setprio 2
s_nop 7''')
a('.p2align 6\nL_attn:')
for st in range(8):
    sl, i = st >> 2, st & 3
    cur = st & 1
    nxt = cur ^ 1
    nsl, ni = (sl, i + 1) if i < 3 else (sl ^ 1, 0)
    noff = nsl * SLOTD + ni * TILE
    L = [pv(OB, nxt, 1, SB)] + rdK(nxt, noff) + exps(SA, 0, 3) + [qk1(SB, cur, QB1)] + exps(SA, 3, 7) \
        + [qk2(SB, cur, QB2)] + exps(SA, 7, 11) + [pv(OA, cur, 0, SA)] + exps(SA, 11, 16) + rdV(nxt, noff) \
        + exps(SB, 0, 1) + [pv(OA, cur, 1, SA)] + exps(SB, 1, 4) + ['s_waitcnt lgkmcnt(2)', qk1(SA, nxt, QA1)] \
        + exps(SB, 4, 8) + [qk2(SA, nxt, QA2)] + exps(SB, 8, 12) + [pv(OB, cur, 0, SB)] + exps(SB, 12, 16) \
        + ['s_waitcnt lgkmcnt(0)']
    if i == 2:
        L += ['s_barrier', 's_setprio 3']
    else:
        L += ['s_setprio %d' % {3: 2, 0: 1, 1: 0}[i]]
    if st == 7:
        L += [f's_sub_u32 s{sLOOP}, s{sLOOP}, 1', f's_cmp_lg_u32 s{sLOOP}, 0', 's_cbranch_scc1 L_attn']
    for x in L:
        a(x)
a(pv(OB, 1, 1, SB))
a('s_setprio 0')
a('s_branch L_epi')

a('L_slow:')
a(f'''s_mov_b32 s{sSLOW}, 1
v_mov_b32 v{vMA}, 0xff7fffff
v_mov_b32 v{vMB}, 0xff7fffff
s_mov_b32 s{sLOOP}, 0
s_waitcnt lgkmcnt(0)
L_slow_tile:''')
for x in rdK(0, 0) + rdV(0, 0):
    a(x)
a('s_waitcnt lgkmcnt(0)')
for (S, O, Q1, Q2, vM) in ((SA, OA, QA1, QA2, vMA), (SB, OB, QB1, QB2, vMB)):
    a(qk1(S, 0, Q1))
    a(qk2(S, 0, Q2))
    a(f'v_max3_f32 v8, v{S}, v{S+1}, v{vM}')
    for i in range(2, 16, 2):
        a(f'v_max3_f32 v8, v{S+i}, v{S+i+1}, v8')
    a(f'''v_mov_b32 v9, v8
    s_nop 1
    v_permlane32_swap_b32 v8, v9
    v_max_f32 v8, v8, v9
    v_sub_f32 v9, v{vM}, v8
    v_exp_f32 v9, v9
    v_mov_b32 v{vM}, v8''')
    for i in range(16):
        a(f'v_sub_f32 v{S+i}, v{S+i}, v8')
    for i in range(16):
        a(f'v_mul_f32 v{O+i}, v{O+i}, v9')
    for x in exps(S, 0, 16):
        a(x)
    a(pv(O, 0, 0, S))
    a(pv(O, 0, 1, S))
a(f'''s_add_u32 s{sLOOP}, s{sLOOP}, 1
s_and_b32 s{sT0}, s{sLOOP}, 3
s_mov_b32 s{sT1}, {TILE}
s_cmp_lg_u32 s{sT0}, 0
s_cbranch_scc1 L_slow_adv
s_barrier
s_and_b32 s{sT0}, s{sLOOP}, 4
s_cmp_lg_u32 s{sT0}, 0
s_mov_b32 s{sT1}, {SLOTD - 3*TILE}
s_cselect_b32 s{sT1}, s{sT1}, {(-SLOTD - 3*TILE) & 0xffffffff}
L_slow_adv:
v_add_u32 v{vK}, s{sT1}, v{vK}
v_add_u32 v{vK2}, s{sT1}, v{vK2}
v_add_u32 v{vV}, s{sT1}, v{vV}
s_cmp_lt_u32 s{sLOOP}, 32
s_cbranch_scc1 L_slow_tile''')

a('L_epi:')
stamp(7)
a(f'''s_lshl_b32 s{sT0}, s{sRT}, 12
s_mul_i32 s{sT1}, s{sKH}, {SLOTD}
s_add_u32 s{sT1}, s{sT1}, s{sT0}
s_add_u32 s{sT1}, s{sT1}, {L_SL0}
v_lshl_add_u32 v8, v{vLANE}, 4, s{sT1}
s_xor_b32 s{sT2}, s{sKH}, 1
s_mul_i32 s{sT2}, s{sT2}, {SLOTD}
s_add_u32 s{sT2}, s{sT2}, s{sT0}
s_add_u32 s{sT2}, s{sT2}, {L_SL0}
v_lshl_add_u32 v9, v{vLANE}, 4, s{sT2}
s_lshl_b32 s{sT0}, s{sW}, 2
s_add_u32 s{sT1}, s{sT0}, {L_MISC + M_PE1}
v_mov_b32 v10, s{sT1}
s_xor_b32 s{sT1}, s{sT1}, 16
v_mov_b32 v11, s{sT1}
s_cmp_eq_u32 s{sKH}, 0
s_cbranch_scc1 L_e_k0''')
for i in range(16):
    a(f'v_swap_b32 v{OA+i}, v{OB+i}')
a(f'v_swap_b32 v{vMA}, v{vMB}')
a('L_e_k0:')
a(f'v_mov_b32 v{OB+13}, v{vMB}')
for q in range(4):
    a(f'ds_write_b128 v8, {v(OB+4*q,4)} offset:{1024*q}')
a(f'''s_waitcnt lgkmcnt(0)
s_mov_b64 exec, 1
ds_write_b32 v10, v{vONE}
s_mov_b64 exec, -1''')
a(f'''s_lshl_b32 s{sT0}, s{sG}, 2
s_add_u32 s{sT0}, s{sT0}, s{sRT}          ; H
s_lshr_b32 s{sT1}, s{sT0}, 3
s_mul_i32 s{sT1}, s{sT1}, 5               ; 5*(H>>3)
s_bfe_u32 s{sT2}, s{sT0}, 0x20001
s_add_u32 s{sT2}, s{sT2}, s{sT1}
s_lshl_b32 s{sT3}, s{sRHO}, 2
s_lshl_b32 s{sT4}, s{sKH}, 1
s_add_u32 s{sT3}, s{sT3}, s{sT4}
s_mul_i32 s{sT3}, s{sT3}, 20480
s_add_u32 s{sT3}, s{sT3}, {WS_OX}
s_lshl_b32 s{sT2}, s{sT2}, 10
s_add_u32 s{sU0}, s{sT2}, s{sT3}
s_and_b32 s{sT2}, s{sT0}, 1
s_lshl_b32 s{sT2}, s{sT2}, 9
s_add_u32 s{sU0}, s{sU0}, s{sT2}          ; + kq(=2*(H&1))*256
s_add_u32 s{sT1}, s{sT1}, 4
s_lshl_b32 s{sT1}, s{sT1}, 10
s_add_u32 s{sU1}, s{sT1}, s{sT3}
s_bfe_u32 s{sT1}, s{sT0}, 0x10002         ; (hh>>2)
s_lshl_b32 s{sT1}, s{sT1}, 9
s_add_u32 s{sU1}, s{sU1}, s{sT1}
s_and_b32 s{sT1}, s{sT0}, 1
s_lshl_b32 s{sT1}, s{sT1}, 8
s_add_u32 s{sU1}, s{sU1}, s{sT1}
s_bfe_u32 s{sT1}, s{sT0}, 0x10001
s_lshl_b32 s{sT1}, s{sT1}, 3
s_add_u32 s{sU1}, s{sU1}, s{sT1}
s_lshl_b32 s{sT1}, s{sRHO}, 1
s_add_u32 s{sT1}, s{sT1}, s{sKH}
s_lshl_b32 s{sT1}, s{sT1}, 5
s_add_u32 s{sT1}, s{sT1}, s{sT0}
s_lshl_b32 s{sU2}, s{sT1}, 7
s_add_u32 s{sU2}, s{sU2}, {WS_FO}
v_bfe_u32 v12, v{vLANE}, 4, 1
v_mul_u32_u24 v12, 20480, v12
v_and_b32 v13, 15, v{vLANE}
v_lshl_add_u32 v13, v13, 4, v12
v_lshrrev_b32 v12, 5, v{vLANE}
v_lshl_add_u32 v12, v12, 8, v13
v_cmp_gt_u32 s[{sM0}:{sM0+1}], 32, v{vLANE}''')
lds_wait_v(11, 1)
for q in range(4):
    a(f'ds_read_b128 {v(SA+4*q,4)}, v9 offset:{1024*q}')
a(f'''s_cmp_eq_u32 s{sSLOW}, 0
s_waitcnt lgkmcnt(0)
s_cbranch_scc1 L_e_fast
v_max_f32 v14, v{vMA}, v{SA+13}
v_sub_f32 v15, v{vMA}, v14
v_sub_f32 v14, v{SA+13}, v14
v_exp_f32 v15, v15
v_exp_f32 v14, v14
s_nop 0''')
for i in range(13):
    a(f'v_mul_f32 v{OA+i}, v{OA+i}, v15')
    a(f'v_mul_f32 v{SA+i}, v{SA+i}, v14')
a('L_e_fast:')
for i in range(13):
    a(f'v_add_f32 v{OA+i}, v{OA+i}, v{SA+i}')
a(f'''v_cndmask_b32 v14, v{OA+8}, v{OA+12}, s[{sM0}:{sM0+1}]
v_rcp_f32 v14, v14
s_nop 0''')
for i in range(12):
    a(f'v_mul_f32 v{OA+i}, v{OA+i}, v14')
for i in range(6):
    a(f'v_cvt_pk_bf16_f32 v{SA+i}, v{OA+2*i}, v{OA+2*i+1}')
a(f'''buffer_store_dwordx4 {v(SA,4)}, v12, s[{R_WS}:{R_WS+3}], s{sU0} offen sc1
s_mov_b64 exec, s[{sM0}:{sM0+1}]
buffer_store_dwordx2 {v(SA+4,2)}, v13, s[{R_WS}:{R_WS+3}], s{sU1} offen sc1
s_mov_b64 exec, -1''')
vOA = 120
vOL = 130
gemm_lanepart(vOL)
a(f's_cmp_eq_u32 s{sKH}, 0')
for i in range(10):
    a(f'''s_mov_b32 s{sT0}, {WO_UNIT[i]}
    s_cselect_b32 s{sT0}, s{sT0}, {WO_UNIT[10+i]}
    v_add_u32 v{vOA+i}, s{sT0}, v{vOL}''')
a(f'''v_mov_b32 v14, s{sNON}
s_waitcnt vmcnt(0)
s_mov_b64 exec, 1
buffer_store_dword v14, off, s[{R_WS}:{R_WS+3}], s{sU2} sc1
s_mov_b64 exec, -1''')
stamp(8)
a(f'''s_lshl_b32 s{sT1}, s{sRHO}, 1
s_lshr_b32 s{sT2}, s{sRT}, 1
s_add_u32 s{sT1}, s{sT1}, s{sT2}
s_lshl_b32 s{sT1}, s{sT1}, 1
s_add_u32 s{sT1}, s{sT1}, s{sKH}
s_lshl_b32 s{sT1}, s{sT1}, 11
s_add_u32 s{sT1}, s{sT1}, {WS_FO}
v_and_b32 v12, 15, v{vLANE}
v_lshlrev_b32 v12, 7, v12
s_lshl_b32 s{sT2}, s{sRHO}, 2
s_add_u32 s{sT2}, s{sT2}, s{sRT}
s_mul_i32 s{sT2}, s{sT2}, 20480
s_mul_i32 s{sT3}, s{sKH}, 10240
s_add_u32 s{sT2}, s{sT2}, s{sT3}
s_add_u32 s{sU0}, s{sT2}, {WS_OX}
v_lshlrev_b32 v13, 4, v{vLANE}
s_mov_b32 s{sSPIN}, {SPIN}
L_e_poll:
buffer_load_dword v14, v12, s[{R_WS}:{R_WS+3}], s{sT1} offen sc1
s_waitcnt vmcnt(0)
v_cmp_ne_u32 vcc, s{sNON}, v14
s_cbranch_vccz L_e_go
s_sub_u32 s{sSPIN}, s{sSPIN}, 1
s_cmp_lg_u32 s{sSPIN}, 0
s_cbranch_scc1 L_e_poll
L_e_go:''')
stamp(9)
for i in range(10):
    if i in (4, 8):
        a(f's_add_u32 s{sU0}, s{sU0}, 4096')
    a(f'buffer_load_dwordx4 {v(XF+4*i,4)}, v13, s[{R_WS}:{R_WS+3}], s{sU0} offen offset:{1024*(i&3)} sc1')
srd(R_C, P_OUT, 2048 * 2560)
gemm(XF, ACC, AB, lambda i: (vOA + i, 0), waits={i: f's_waitcnt vmcnt({9-i})' for i in range(10)})
stamp(10)
a(f'''s_lshl_b32 s{sT0}, s{sW}, 2
s_add_u32 s{sT1}, s{sT0}, {L_MISC + M_PE2}
v_mov_b32 v10, s{sT1}
s_xor_b32 s{sT1}, s{sT1}, 16
v_mov_b32 v11, s{sT1}
s_lshl_b32 s{sT0}, s{sRHO}, 6
s_lshl_b32 s{sT1}, s{sRT}, 4
s_add_u32 s{sT0}, s{sT0}, s{sT1}
s_mul_i32 s{sT0}, s{sT0}, 2560
s_mul_i32 s{sT1}, s{sG}, 160
s_add_u32 s{sU0}, s{sT0}, s{sT1}
v_and_b32 v12, 15, v{vLANE}
v_mul_u32_u24 v12, 2560, v12
v_lshrrev_b32 v13, 4, v{vLANE}
v_lshl_add_u32 v12, v13, 3, v12
s_cmp_eq_u32 s{sKH}, 0
s_cbranch_scc0 L_e_r1''')
for kh, (send, keep) in enumerate((((3, 4), (0, 1, 2)), ((0, 1, 2), (3, 4)))):
    if kh == 1:
        a('L_e_r1:')
    for n, ct in enumerate(send):
        a(f'ds_write_b128 v9, {v(ACC+4*ct,4)} offset:{1024*n}')
    a(f'''s_waitcnt lgkmcnt(0)
    s_mov_b64 exec, 1
    ds_write_b32 v10, v{vONE}
    s_mov_b64 exec, -1''')
    lds_wait_v(11, 1)
    for n, ct in enumerate(keep):
        a(f'ds_read_b128 {v(AB+4*n,4)}, v8 offset:{1024*n}')
    for n, ct in enumerate(keep):
        a(f's_waitcnt lgkmcnt({len(keep)-1-n})')
        for i in range(4):
            a(f'v_add_f32 v{ACC+4*ct+i}, v{ACC+4*ct+i}, v{AB+4*n+i}')
        a(f'''v_cvt_pk_bf16_f32 v{AB+4*n}, v{ACC+4*ct}, v{ACC+4*ct+1}
        v_cvt_pk_bf16_f32 v{AB+4*n+1}, v{ACC+4*ct+2}, v{ACC+4*ct+3}
        buffer_store_dwordx2 {v(AB+4*n,2)}, v12, s[{R_C}:{R_C+3}], s{sU0} offen offset:{32*ct}''')
    if STAMPS or DBGT:
        a('s_waitcnt vmcnt(0)')
    stamp(11)
    a('s_endpgm')

a('L_S:')
a(f'''s_sub_u32 s{sSI}, s{sW}, 8
s_mul_i32 s{sCH}, s{sRHO}, 20
s_lshl_b32 s{sT0}, s{sG}, 1
s_mul_i32 s{sT1}, s{sG}, 3
s_sub_u32 s{sT1}, s{sT1}, 4
s_cmp_lt_u32 s{sG}, 4
s_cselect_b32 s{sT0}, s{sT0}, s{sT1}
s_cselect_b32 s{sU4}, 2, 3
s_add_u32 s{sCH}, s{sCH}, s{sT0}
s_add_u32 s{sCH}, s{sCH}, s{sSI}
s_cmp_lt_u32 s{sSI}, s{sU4}
s_cbranch_scc1 L_kgen
s_cmp_eq_u32 s{sSI}, s{sU4}
s_cbranch_scc1 L_tu
buffer_load_dword v8, off, s[{R_WS}:{R_WS+3}], 0 sc1
s_barrier
s_waitcnt vmcnt(0)
v_readfirstlane_b32 s{sNON}, v8
s_add_u32 s{sNON}, s{sNON}, {NONCE_K}
s_branch L_poll_kv''')

UR = 16
a('L_tu:')
srd(R_A, P_U, 2048 * 1280)
a(f'buffer_load_dword v8, off, s[{R_WS}:{R_WS+3}], 0 sc1')
pattern_regs(56, 'lin')
a(f'''s_mul_i32 s{sT0}, s{sRHO}, {64*1280}
s_mul_i32 s{sT1}, s{sG}, 160
s_add_u32 s{sT0}, s{sT0}, s{sT1}
s_add_u32 s{sT1}, s{sT0}, 40960''')
for j in range(10):
    a(f'buffer_load_dwordx4 {v(UR+4*j,4)}, v{56+j%5}, s[{R_A}:{R_A+3}], s{sT0 if j < 5 else sT1} offen')
a(f'''s_barrier
s_cmp_lt_u32 s{sG}, 4
s_mov_b32 s{sU0}, {L_SL0 + 21504}
s_cselect_b32 s{sU0}, s{sU0}, {L_SL0}
s_cbranch_scc0 L_tu_go''')
lds_wait(M_X, 8)
a(f'''L_tu_go:
v_lshl_add_u32 v9, v{vLANE}, 4, s{sU0}
v_lshrrev_b32 v{vT0}, 4, v{vLANE}
v_bfe_u32 v{vT1}, v{vLANE}, 2, 2
v_lshl_add_u32 v{vT1}, v{vT0}, 3, v{vT1}
v_mul_u32_u24 v{vT1}, 160, v{vT1}
v_and_b32 v{vT2}, 3, v{vLANE}
v_lshl_add_u32 v{vT1}, v{vT2}, 3, v{vT1}
v_add_u32 v10, s{sU0}, v{vT1}
v_and_b32 v{vT1}, 15, v{vLANE}
v_lshlrev_b32 v{vT1}, 12, v{vT1}
v_lshl_add_u32 v11, v{vT0}, 4, v{vT1}
s_mul_i32 s{sT0}, s{sG}, {80*4096}
s_lshl_b32 s{sT1}, s{sRHO}, 7
s_add_u32 s{sT0}, s{sT0}, s{sT1}
s_add_u32 s{sU1}, s{sT0}, {WS_UT}
s_waitcnt vmcnt(10)
v_readfirstlane_b32 s{sNON}, v8
s_add_u32 s{sNON}, s{sNON}, {NONCE_K}''')
for j in range(10):
    a(f'''s_waitcnt vmcnt({9-j})
    ds_write_b128 v9, {v(UR+4*j,4)} offset:{1024*j}''')
for ct in range(5):
    for h in range(2):
        d = UR + 8 * ct + 4 * h
        for e in range(2):
            a(f'ds_read_b64_tr_b16 {v(d+2*e,2)}, v10 offset:{(32*h+4*e)*160 + 32*ct}')
    if ct == 2:
        pass
    a('s_waitcnt lgkmcnt(0)')
    for h in range(2):
        a(f'buffer_store_dwordx4 {v(UR+8*ct+4*h,4)}, v11, s[{R_WS}:{R_WS+3}], s{sU1} offen offset:{64*h} sc1')
    a(f's_add_u32 s{sU1}, s{sU1}, 65536')
lds_wait(M_X, 8)
a(f'''s_lshl_b32 s{sT0}, s{sRHO}, 3
s_add_u32 s{sT0}, s{sT0}, s{sG}
s_lshl_b32 s{sT0}, s{sT0}, 7
s_add_u32 s{sT0}, s{sT0}, {WS_FU}
v_mov_b32 v8, s{sNON}
s_waitcnt vmcnt(0)
s_mov_b64 exec, 1
buffer_store_dword v8, off, s[{R_WS}:{R_WS+3}], s{sT0} sc1
s_mov_b64 exec, -1''')
stamp(2)
a(f'''s_cmp_eq_u32 s{sSI}, 3
s_cbranch_scc1 L_poll_kv
s_barrier''')
for n in range(8):
    a('s_barrier')
a('s_branch L_yout')

a('L_poll_kv:')
vS_L16 = 60
a(f'''v_lshlrev_b32 v9, 7, v{vLANE}
v_lshlrev_b32 v{vS_L16}, 4, v{vLANE}
s_mov_b32 s{sT0}, {WS_FKV}
s_mov_b32 s{sT1}, {WS_FKV + 8192}
s_mov_b32 s{sT2}, {WS_FKV + 16384}
s_mov_b32 s{sT3}, {WS_FKV + 24576}
v_mov_b32 v8, s{sNON}
s_mov_b64 exec, 1
ds_write_b32 v{vMISC}, v8 offset:{M_NONCE}
s_mov_b64 exec, -1
s_mov_b32 s{sSPIN}, {SPIN}
L_pk:''')
for i in range(4):
    a(f'buffer_load_dwordx2 {v(16+2*i,2)}, v9, s[{R_WS}:{R_WS+3}], s{sT0+i} offen sc1')
a(f'''s_waitcnt vmcnt(0)
v_xor_b32 v10, s{sNON}, v16
v_xor_b32 v11, s{sNON}, v18
v_xor_b32 v12, s{sNON}, v20
v_xor_b32 v13, s{sNON}, v22
v_or_b32 v10, v10, v11
v_or3_b32 v10, v10, v12, v13
v_cmp_ne_u32 vcc, 0, v10
s_cbranch_vccz L_pk_go
s_sub_u32 s{sSPIN}, s{sSPIN}, 1
s_cmp_lg_u32 s{sSPIN}, 0
s_cbranch_scc1 L_pk
L_pk_go:''')
stamp(3)


def kv_dma(n):
    a(f'''s_add_u32 s{sT0}, s{sXCD}, {n}
    s_and_b32 s{sT0}, s{sT0}, 7
    s_mul_i32 s{sT0}, s{sT0}, {GROUP}
    s_add_u32 s{sT0}, s{sT0}, {WS_KVT}''')
    base = L_SL0 + (n & 1) * SLOTD
    for i in range(21):
        if i and i % 4 == 0:
            a(f's_add_u32 s{sT0}, s{sT0}, 4096')
        if i % 4 == 0:
            a(f's_mov_b32 m0, {base + 1024*i}\ns_nop 0')
        a(f'buffer_load_dwordx4 v{vS_L16}, s[{R_WS}:{R_WS+3}], s{sT0} offen offset:{1024*(i&3)} sc1 lds')


kv_dma(0)
a(f'''v_max_u32 v10, v17, v19
v_max3_u32 v10, v10, v21, v23''')
for r in (8, 4, 2):
    a(f'v_max_u32_dpp v10, v10, v10 row_ror:{r} row_mask:0xf bank_mask:0xf')
a(f'''v_mov_b32 v11, v10
s_nop 1
v_permlane16_swap_b32 v10, v11
v_max_u32 v10, v10, v11
v_mov_b32 v11, v10
s_nop 1
v_permlane32_swap_b32 v10, v11
v_max_u32 v10, v10, v11
v_lshl_add_u32 v11, v{vLANE}, 2, v{vMISC}
s_mov_b64 exec, 3
ds_write_b32 v11, v10 offset:{M_KMAX}
s_mov_b64 exec, -1''')
srd(R_A, P_WO, 640 * 1280)
vWN, vWL = 64, 70
pattern_regs(vWN, 'won')
pattern_regs(vWL, 'wol')
a(f's_mul_i32 s{sU0}, s{sG}, 160')


def wo_unit(st):
    sb, k = divmod(st, 5)
    row0 = 160 * sb + (40 * k if k < 4 else 0)
    pat = vWN if k < 4 else vWL
    a(f's_add_u32 s{sT0}, s{sU0}, {row0*1280}')
    for j in range(5):
        a(f'''s_mov_b32 m0, {WO_UNIT[st] + 1024*j}
        s_nop 0
        buffer_load_dwordx4 v{pat+j}, s[{R_A}:{R_A+3}], s{sT0} offen lds''')


a('s_waitcnt vmcnt(0) lgkmcnt(0)')
stamp(5)
a('s_barrier')
a('s_setprio 3')
kv_dma(1)
wo_unit(0)
a('s_waitcnt vmcnt(5)\ns_barrier')
plan = {0: [1, 2], 1: [3, 4], 2: [5, 6], 3: [7, 8], 4: [9, 10], 5: [11, 12], 6: [13, 14, 15, 16, 17, 18, 19]}
for n in range(7):
    if n + 2 < 8:
        kv_dma(n + 2)
    if n == 6:
        a(f'''s_lshl_b32 s{sT0}, s2, 7
        s_add_u32 s{sT0}, s{sT0}, {WS_FY}
        v_mov_b32 v8, s{sNON}
        s_mov_b64 exec, 1
        buffer_store_dword v8, off, s[{R_WS}:{R_WS+3}], s{sT0} sc1
        s_mov_b64 exec, -1''')
    for st in plan[n]:
        wo_unit(st)
    if n == 1:
        a(f'''s_cmp_lg_u32 s2, 0
        s_cbranch_scc1 L_noz
        s_mov_b32 s{sSPIN}, {SPIN}
        s_mov_b32 s{sT0}, {WS_FU}
        s_mov_b32 s{sT1}, {WS_FU + 8192}
        s_mov_b32 s{sT2}, {WS_FU + 16384}
        s_mov_b32 s{sT3}, {WS_FU + 24576}
        L_zp:''')
        for i in range(4):
            a(f'buffer_load_dword v{16+i}, v9, s[{R_WS}:{R_WS+3}], s{sT0+i} offen sc1')
        a(f'''s_waitcnt vmcnt(0)
        v_xor_b32 v10, s{sNON}, v16
        v_xor_b32 v11, s{sNON}, v17
        v_xor_b32 v12, s{sNON}, v18
        v_xor_b32 v13, s{sNON}, v19
        v_or_b32 v10, v10, v11
        v_or3_b32 v10, v10, v12, v13
        v_cmp_ne_u32 vcc, 0, v10
        s_cbranch_vccz L_zp_go
        s_sub_u32 s{sSPIN}, s{sSPIN}, 1
        s_cmp_lg_u32 s{sSPIN}, 0
        s_cbranch_scc1 L_zp
        L_zp_go:
        v_mov_b32 v8, s{sNON}
        s_mov_b64 exec, 1
        buffer_store_dword v8, off, s[{R_WS}:{R_WS+3}], 0 sc1
        s_mov_b64 exec, -1
        s_waitcnt vmcnt(0)
        L_noz:''')
    if n < 6:
        a(f's_waitcnt vmcnt({5*len(plan[n])})')
    else:
        a('s_waitcnt vmcnt(0)')
    a('s_barrier')
a('s_branch L_yout')

a('L_kgen:')
PRM = 16
vLDT, vDSK = 28, 29
srd(R_A, P_LA, 640 * 384)
srd(R_B, P_AI, 640 * 384)
srd(R_C, P_CR, 640 * 384)
srd(R_D, P_CI, 640 * 384)
srd(R_E, P_LDT, 1280)
srd(R_F, P_DS, 1280)
a(f'''v_lshlrev_b32 v8, 1, v{vLANE}
s_mul_i32 s{sT0}, s{sCH}, 384
s_lshl_b32 s{sT1}, s{sCH}, 1
buffer_load_ushort v{vLDT}, off, s[{R_E}:{R_E+3}], s{sT1}''')
for c in range(3):
    for i, r in enumerate((R_A, R_B, R_C, R_D)):
        a(f'buffer_load_ushort v{PRM+4*c+i}, v8, s[{r}:{r+3}], s{sT0} offen offset:{128*c}')
a(f'buffer_load_ushort v{vDSK}, off, s[{R_F}:{R_F+3}], s{sT1}')
a('s_barrier')
vDT, vXW, vXRA, vXRB = 30, 31, 32, 33
KACC = 36
FA, FB = 52, 84
Z1, W1, W2, Z256, Z512, Z768, Z1024, ZT, ZU = 116, 118, 120, 122, 124, 126, 128, 130, 132
XE, XO, Y0, Y2, Y4, Y6, YC, TM, TN = 134, 136, 138, 140, 142, 144, 146, 148, 150
PK = 152
LOG2E = math.log2(math.e)
L_HI = struct.unpack('<f', struct.pack('<f', LOG2E))[0]
L_LO = LOG2E - L_HI
a(f'''s_mul_i32 s{sU0}, s{sSI}, {AREA}
v_lshl_add_u32 v{vXW}, v{vLANE}, 2, s{sU0}
v_and_b32 v{vT0}, 31, v{vLANE}
v_lshrrev_b32 v{vT1}, 5, v{vLANE}
v_lshlrev_b32 v{vT1}, 4, v{vT1}
v_add_u32 v{vT1}, s{sU0}, v{vT1}
v_mov_b32 v{vT3}, 272
v_mad_u32_u24 v{vXRA}, v{vT0}, v{vT3}, v{vT1}
v_min_u32 v{vT0}, 20, v{vT0}
v_mad_u32_u24 v{vXRB}, v{vT0}, v{vT3}, v{vT1}
s_mov_b32 s{sU1}, {f32(L_HI)}
s_mov_b32 s{sU2}, {f32(L_LO)}
s_mov_b32 s{sU3}, {f32(math.log(2.0))}''')
for i in range(16):
    a(f'v_mov_b32 v{KACC+i}, 0')


def exp_bf16(dst, src, t0, t1):
    a(f'''v_mul_f32 v{t0}, s{sU1}, v{src}
    v_fma_f32 v{t1}, v{src}, s{sU1}, -v{t0}
    v_fmac_f32 v{t1}, s{sU2}, v{src}
    v_exp_f32 v{t0}, v{t0}
    v_mul_f32 v{t1}, s{sU3}, v{t1}
    v_fmac_f32 v{t0}, v{t0}, v{t1}
    v_cvt_pk_bf16_f32 v{dst}, v{t0}, v{t0}
    v_and_b32 v{dst}, 0xffff0000, v{dst}''')


def cmul(d, x, y, t):
    a(f'''v_pk_mul_f32 {v(t,2)}, {v(x,2)}, {v(y,2)} op_sel:[0,0] op_sel_hi:[0,1]
    v_pk_fma_f32 {v(d,2)}, {v(x,2)}, {v(y,2)}, {v(t,2)} op_sel:[1,1,0] op_sel_hi:[1,0,1] neg_lo:[1,0,0]''')


pkn = [0]


def putX(i, x):
    p = PK + (pkn[0] & 3)
    pkn[0] += 1
    a(f'''v_cvt_pk_bf16_f32 v{p}, v{x}, v{x+1}
    ds_write_b32 v{vXW}, v{p} offset:{272*i}''')


def putY(i, y):
    p = PK + (pkn[0] & 3)
    pkn[0] += 1
    a(f'''v_cvt_pk_bf16_f32 v{p}, v{y}, -v{y+1}
    ds_write_b32 v{vXW}, v{p} offset:{272*i}''')


a(f'''s_waitcnt vmcnt(13)
v_lshlrev_b32 v{vLDT}, 16, v{vLDT}''')
exp_bf16(vDT, vLDT, 8, 9)
a(f'''s_mov_b32 s{sLOOP}, 3
s_waitcnt vmcnt(0)''')
stamp(2)
a('L_kg_loop:')
a(f'''v_lshlrev_b32 v8, 16, v{PRM}
v_lshlrev_b32 v9, 16, v{PRM+1}
v_lshlrev_b32 v{Y0}, 16, v{PRM+2}
v_lshlrev_b32 v{Y0+1}, 16, v{PRM+3}''')
for i in range(8):
    a(f'v_mov_b32 v{PRM+i}, v{PRM+4+i}')
exp_bf16(10, 8, 11, 12)
a(f'''v_mul_f32 v10, v10, v{vDT}
v_mul_f32 v9, v9, v{vDT}
v_mul_f32 v10, {f32(-L_HI)}, v10
v_mul_f32 v9, 0.15915494, v9
v_add_f32 v8, v{vDT}, v{vDT}
v_mul_f32 v{Y0}, v{Y0}, v8
v_mul_f32 v{Y0+1}, v{Y0+1}, v8''')
for (dst, p) in ((W1, 8.0), (Z1, 1.0), (Z256, 256.0)):
    if p == 1.0:
        a(f'''v_exp_f32 v11, v10
        v_fract_f32 v12, v9''')
    else:
        a(f'''v_mul_f32 v11, {f32(p)}, v10
        v_mul_f32 v12, {f32(p)}, v9
        v_exp_f32 v11, v11
        v_fract_f32 v12, v12''')
    a(f'''v_cos_f32 v13, v12
    v_sin_f32 v14, v12
    s_nop 0
    v_mul_f32 v{dst}, v11, v13
    v_mul_f32 v{dst+1}, v11, v14''')
a(f'''v_mov_b32 v{PK}, 0x3f80
ds_write_b32 v{vXW}, v{PK}''')
pkn[0] = 1
cmul(W2, W1, W1, TM)
putX(1, W1)
cmul(XO, W1, W2, TN)
putX(2, W2)
cmul(XE, W2, W2, TM)
putX(3, XO)
for i in range(5, 32, 2):
    cmul(XO, XO, W2, TN)
    putX(i - 1, XE)
    if i + 1 < 32:
        cmul(XE, XE, W2, TM)
    putX(i, XO)
for t in range(8):
    a(f'ds_read_b128 {v(FA+4*t,4)}, v{vXRA} offset:{32*t}')
putY(0, Y0)
cmul(YC, Y0, Z1, TM)
cmul(Z512, Z256, Z256, TN)
putY(1, YC)
cmul(Y2, YC, Z1, TM)
cmul(Z768, Z512, Z256, TN)
putY(2, Y2)
cmul(YC, Y2, Z1, TM)
cmul(Z1024, Z512, Z512, TN)
putY(3, YC)
cmul(Y4, YC, Z1, TM)
cmul(ZT, Y0, Z256, TN)
putY(4, Y4)
cmul(YC, Y4, Z1, TM)
putY(8, ZT)
cmul(ZU, Y2, Z256, TN)
putY(5, YC)
cmul(Y6, YC, Z1, TM)
putY(9, ZU)
cmul(ZT, Y4, Z256, TN)
putY(6, Y6)
cmul(YC, Y6, Z1, TM)
putY(10, ZT)
cmul(ZU, Y6, Z256, TN)
putY(7, YC)
cmul(ZT, Y0, Z512, TM)
putY(11, ZU)
cmul(ZU, Y4, Z512, TN)
putY(12, ZT)
cmul(ZT, Y0, Z768, TM)
putY(13, ZU)
cmul(ZU, Y4, Z768, TN)
putY(14, ZT)
cmul(Y2, Y0, Z1024, TM)
putY(15, ZU)
cmul(ZT, Y2, Z256, TN)
putY(16, Y2)
cmul(ZU, Y2, Z512, TM)
putY(17, ZT)
cmul(ZT, Y2, Z768, TN)
putY(18, ZU)
cmul(ZU, Y2, Z1024, TM)
putY(19, ZT)
putY(20, ZU)
for t in range(8):
    a(f'ds_read_b128 {v(FB+4*t,4)}, v{vXRB} offset:{32*t}')
for t in range(8):
    a(f's_waitcnt lgkmcnt({7-t})')
    a(f'v_mfma_f32_32x32x16_bf16 {v(KACC,16)}, {v(FA+4*t,4)}, {v(FB+4*t,4)}, {v(KACC,16)}')
a(f'''s_sub_u32 s{sLOOP}, s{sLOOP}, 1
s_cmp_lg_u32 s{sLOOP}, 0
s_cbranch_scc1 L_kg_loop''')
stamp(3)
a(f'''v_and_b32 v{vT0}, 31, v{vLANE}
v_mul_u32_u24 v{vT0}, 144, v{vT0}
v_lshrrev_b32 v{vT1}, 5, v{vLANE}
v_lshl_add_u32 v{vT0}, v{vT1}, 4, v{vT0}
v_add_u32 v8, s{sU0}, v{vT0}
v_and_b32 v{vT0}, 1, v{vLANE}
v_lshrrev_b32 v{vT1}, 1, v{vLANE}
v_lshlrev_b32 v{vT1}, 2, v{vT1}
v_add_u32 v{vT1}, s{sU0}, v{vT1}
v_mov_b32 v{vT2}, 576
v_mad_u32_u24 v9, v{vT0}, v{vT2}, v{vT1}
v_mov_b32 v{vT2}, 288
v_mad_u32_u24 v10, v{vT0}, v{vT2}, v{vT1}
; seg2: (l>>5)*288 + (l&31)*4
v_lshrrev_b32 v{vT0}, 5, v{vLANE}
v_mul_u32_u24 v{vT0}, 288, v{vT0}
v_and_b32 v{vT1}, 31, v{vLANE}
v_lshl_add_u32 v{vT0}, v{vT1}, 2, v{vT0}
v_add_u32 v11, s{sU0}, v{vT0}
; seg3: (l>>4)*144 + (l&15)*8
v_lshrrev_b32 v{vT0}, 4, v{vLANE}
v_mul_u32_u24 v{vT0}, 144, v{vT0}
v_and_b32 v{vT1}, 15, v{vLANE}
v_lshl_add_u32 v{vT0}, v{vT1}, 3, v{vT0}
v_add_u32 v12, s{sU0}, v{vT0}
v_mov_b32 v13, s{sU0}''')
for q in range(4):
    a(f'ds_write_b128 v8, {v(KACC+4*q,4)} offset:{32*q}')
G = 52
k0, k1, k2, k3, km = G, G + 1, G + 2, G + 3, G + 4
a1, b1, c1, z1 = G + 5, G + 6, G + 7, G + 8
a2, b2, c2 = G + 9, G + 10, G + 11
a3, b3, c3 = G + 12, G + 13, G + 14
for i in range(4):
    a(f'ds_read_b32 v{k0+i}, v9 offset:{144*i}')
a(f'''ds_read_b32 v{a1}, v10 offset:{8*144}
ds_read_b32 v{b1}, v10 offset:{9*144}
ds_read_b32 v{c1}, v13 offset:{12*144}
ds_read_b32 v{z1}, v13 offset:{7*144 + 31*4}
ds_read_b32 v{a2}, v11 offset:{12*144}
ds_read_b32 v{b2}, v11 offset:{13*144}
ds_read_b32 v{c2}, v13 offset:{16*144}
ds_read_b64 {v(a3,2)}, v12 offset:{16*144}
ds_read_b32 v{c3}, v13 offset:{20*144}
v_lshlrev_b32 v{vT0}, 3, v{vLANE}
v_sub_u32 v8, s{sU0}, v{vT0}
v_add_u32 v8, {4*1022}, v8
v_lshlrev_b32 v{vT0}, 4, v{vLANE}
v_sub_u32 v9, s{sU0}, v{vT0}
v_add_u32 v9, {4*764}, v9
v_lshlrev_b32 v{vT0}, 5, v{vLANE}
v_sub_u32 v10, s{sU0}, v{vT0}
v_add_u32 v10, {4*504}, v10
v_add_u32 v11, 4160, v8
v_add_u32 v12, 4160, v9
v_add_u32 v14, 4160, v10
v_subrev_u32 v15, 512, v8
v_subrev_u32 v34, 512, v11
v_lshl_add_u32 v35, v{vLANE}, 2, s{sU0}
s_waitcnt lgkmcnt(0)
v_mov_b32_dpp v{km}, v{k3} wave_shr:1 row_mask:0xf bank_mask:0xf bound_ctrl:0
v_mov_b32_dpp v{c1}, v{a1} wave_shl:1 row_mask:0xf bank_mask:0xf
v_mov_b32_dpp v{c2}, v{a2} wave_shl:1 row_mask:0xf bank_mask:0xf
v_mov_b32_dpp v{c3}, v{a3} wave_shl:1 row_mask:0xf bank_mask:0xf
v_cmp_eq_u32 s[{sM0}:{sM0+1}], 0, v{vLANE}
s_nop 1
v_cndmask_b32 v{z1}, v{a1}, v{z1}, s[{sM0}:{sM0+1}]''')
E = 68


def pk(d, lo, hi):
    a(f'v_cvt_pk_bf16_f32 v{d}, v{lo}, v{hi}')


pk(E, k3, k2); pk(E + 1, k1, k0); pk(E + 2, k2, k1); pk(E + 3, k0, km)
a(f'''ds_write_b64 v8, {v(E,2)}
ds_write_b64 v11, {v(E+2,2)}''')
pk(E + 4, c1, b1); pk(E + 5, a1, a1); pk(E + 6, b1, a1); pk(E + 7, a1, z1)
a(f'''ds_write_b64 v15, {v(E+4,2)}
ds_write_b64 v34, {v(E+6,2)}''')
pk(E + 8, c2, c2); pk(E + 9, b2, b2); pk(E + 10, b2, a2); pk(E + 11, a2, a2)
pk(E + 12, c2, b2)
a(f'''v_mov_b32 v{E+13}, v{E+9}
v_mov_b32 v{E+14}, v{E+11}
v_mov_b32 v{E+15}, v{E+11}
ds_write_b128 v9, {v(E+8,4)}
ds_write_b128 v12, {v(E+12,4)}''')
F = E + 16
pk(F, c3, c3); pk(F + 2, b3, b3); pk(F + 5, b3, a3); pk(F + 6, a3, a3); pk(F + 9, c3, b3)
a(f'''v_mov_b32 v{F+1}, v{F}
v_mov_b32 v{F+3}, v{F+2}
v_mov_b32 v{F+4}, v{F+2}
v_mov_b32 v{F+7}, v{F+6}
v_mov_b32 v{F+8}, v{F}
v_mov_b32 v{F+10}, v{F+2}
v_mov_b32 v{F+11}, v{F+2}
v_mov_b32 v{F+12}, v{F+2}
v_mov_b32 v{F+13}, v{F+6}
v_mov_b32 v{F+14}, v{F+6}
v_mov_b32 v{F+15}, v{F+6}
ds_write_b128 v10, {v(F,4)}
ds_write_b128 v10, {v(F+4,4)} offset:16
ds_write_b128 v14, {v(F+8,4)}
ds_write_b128 v14, {v(F+12,4)} offset:16
v_mov_b32 v{vT0}, 0
s_mov_b64 exec, 0xffff
ds_write_b32 v35, v{vT0} offset:4096
ds_write_b32 v35, v{vT0} offset:{4096+4160}
s_mov_b64 exec, -1''')
vCA0, vCA1, vCB, vUE = 30, 31, 32, 33
a(f'''; A: area + copy*4160 + 4*(1023 - rho + 4 hi - 240) ; copy = 1 for even rows
v_bfe_u32 v{vT0}, v{vLANE}, 1, 4
v_lshrrev_b32 v{vT1}, 5, v{vLANE}
v_lshlrev_b32 v{vT1}, 2, v{vT1}
v_sub_u32 v{vT0}, v{vT1}, v{vT0}
v_add_u32 v{vT0}, 783, v{vT0}
v_lshlrev_b32 v{vT0}, 2, v{vT0}
v_and_b32 v{vT1}, 1, v{vLANE}
v_xor_b32 v{vT1}, 1, v{vT1}
v_mul_u32_u24 v{vT1}, 4160, v{vT1}
v_add3_u32 v{vCA0}, v{vT0}, v{vT1}, s{sU0}
v_subrev_u32 v{vCA1}, 2048, v{vCA0}
s_mul_i32 s{sU1}, s{sSI}, {UTA}
s_add_u32 s{sU1}, s{sU1}, {L_UTA}
v_and_b32 v{vT0}, 31, v{vLANE}
v_mul_u32_u24 v{vT0}, 80, v{vT0}
v_lshrrev_b32 v{vT1}, 5, v{vLANE}
v_lshl_add_u32 v{vT2}, v{vT1}, 4, v{vT0}
v_add_u32 v{vT2}, 80, v{vT2}
v_add_u32 v{vCB}, s{sU1}, v{vT2}
v_lshl_add_u32 v{vT2}, v{vT1}, 3, v{vT0}
v_add_u32 v{vT2}, 2560, v{vT2}
v_add_u32 v{vUE}, s{sU1}, v{vT2}
s_waitcnt lgkmcnt(0)''')
stamp(5)
a('s_barrier')
a('s_setprio 3')
a(f'''ds_read_b32 v8, v{vMISC} offset:{M_NONCE}
v_lshl_add_u32 v9, v{vLANE}, 4, s{sU1}
v_mov_b32 v36, 0
v_mov_b32 v37, 0
v_mov_b32 v38, 0
v_mov_b32 v39, 0
ds_write_b128 v9, v[36:39]
ds_write_b128 v9, v[36:39] offset:1024
ds_write_b128 v9, v[36:39] offset:2048
v_and_b32 v10, 31, v{vLANE}
v_lshlrev_b32 v10, 10, v10
s_lshl_b32 s{sT1}, s{sXCD}, 7
s_add_u32 s{sT1}, s{sT1}, {WS_FU}
s_waitcnt lgkmcnt(0)
v_readfirstlane_b32 s{sNON}, v8
s_mov_b32 s{sSPIN}, {SPIN}
L_pu:
buffer_load_dword v11, v10, s[{R_WS}:{R_WS+3}], s{sT1} offen sc1
s_waitcnt vmcnt(0)
v_cmp_ne_u32 vcc, s{sNON}, v11
s_cbranch_vccz L_pu_go
s_sub_u32 s{sSPIN}, s{sSPIN}, 1
s_cmp_lg_u32 s{sSPIN}, 0
s_cbranch_scc1 L_pu
L_pu_go:
s_lshl_b32 s{sT0}, s{sCH}, 12
s_add_u32 s{sT0}, s{sT0}, {WS_UT}''')
for j in range(5):
    a(f'''v_add_u32 v{vT0}, {64*j}, v{vLANE}
    v_mul_u32_u24 v{vT1}, 13108, v{vT0}
    v_lshrrev_b32 v{vT1}, 16, v{vT1}
    v_mul_u32_u24 v{vT2}, 5, v{vT1}
    v_sub_u32 v{vT0}, v{vT0}, v{vT2}
    v_min_u32 v{vT0}, 3, v{vT0}
    v_lshlrev_b32 v{vT1}, 6, v{vT1}
    v_lshl_add_u32 v{36+j}, v{vT0}, 4, v{vT1}
    s_add_u32 m0, s{sU1}, {2560 + 1024*j}
    s_nop 0
    buffer_load_dwordx4 v{36+j}, s[{R_WS}:{R_WS+3}], s{sT0} offen sc1 lds''')
N0, N1 = 36, 52
CF = 68
a('s_waitcnt vmcnt(0)')
for i in range(32):
    a(f'v_mov_b32 v{N0+i}, 0')
stamp(6)


def conv_reads(k):
    t, h = k >> 1, k & 1
    d = CF + 16 * (k & 1)
    off = 16 * (15 - (t & 15)) + 8 * h
    L = []
    if t == 16 and h == 0:
        L += [f'v_subrev_u32 v{vCA0}, 1024, v{vCA0}', f'v_subrev_u32 v{vCA1}, 1024, v{vCA1}']
    L += [f'ds_read2_b32 {v(d,2)}, v{vCA0} offset0:{off} offset1:{off+1}',
          f'ds_read2_b32 {v(d+2,2)}, v{vCA0} offset0:{off+2} offset1:{off+3}',
          f'ds_read_b128 {v(d+12,4)}, v{vCB} offset:{(31-t)*80 + 32*h + 2560}',
          f'ds_read_b128 {v(d+8,4)}, v{vCB} offset:{(31-t)*80 + 32*h}',
          f'ds_read2_b32 {v(d+4,2)}, v{vCA1} offset0:{off} offset1:{off+1}',
          f'ds_read2_b32 {v(d+6,2)}, v{vCA1} offset0:{off+2} offset1:{off+3}']
    return L


for x in conv_reads(0):
    a(x)
a('s_barrier')
cuts = [13, 26, 39, 52, 64]
k = 0
for n in range(5):
    while k < cuts[n]:
        d = CF + 16 * (k & 1)
        e = CF + 16 * ((k + 1) & 1)
        nx = conv_reads(k + 1) if k + 1 < 64 else []
        a('s_waitcnt lgkmcnt(0)')
        a(f'v_mfma_f32_32x32x16_bf16 {v(N1,16)}, {v(d,4)}, {v(d+12,4)}, {v(N1,16)}')
        for x in nx[:-3]:
            a(x)
        a(f'v_mfma_f32_32x32x16_bf16 {v(N0,16)}, {v(d,4)}, {v(d+8,4)}, {v(N0,16)}')
        for x in nx[-3:]:
            a(x)
        a(f'v_mfma_f32_32x32x16_bf16 {v(N1,16)}, {v(d+4,4)}, {v(d+8,4)}, {v(N1,16)}')
        k += 1
    a('s_barrier')
stamp(7)
a(f'v_lshlrev_b32 v{vDSK}, 16, v{vDSK}')
for b in range(2):
    for q in range(4):
        a(f'ds_read_b64 {v(CF+8*b+2*q,2)}, v{vUE} offset:{2560*b + 16*q}')
for b in range(2):
    N = (N0, N1)[b]
    for q in range(4):
        u = CF + 8 * b + 2 * q
        a(f's_waitcnt lgkmcnt({7 - 4*b - q})')
        a(f'''v_lshlrev_b32 v8, 16, v{u}
        v_and_b32 v9, 0xffff0000, v{u}
        v_lshlrev_b32 v10, 16, v{u+1}
        v_and_b32 v11, 0xffff0000, v{u+1}
        v_fmac_f32 v{N+4*q}, v8, v{vDSK}
        v_fmac_f32 v{N+4*q+1}, v9, v{vDSK}
        v_fmac_f32 v{N+4*q+2}, v10, v{vDSK}
        v_fmac_f32 v{N+4*q+3}, v11, v{vDSK}
        v_cvt_pk_bf16_f32 v{u}, v{N+4*q}, v{N+4*q+1}
        v_cvt_pk_bf16_f32 v{u+1}, v{N+4*q+2}, v{N+4*q+3}''')
for b in range(2):
    for q in range(4):
        a(f'ds_write_b64 v{vUE}, {v(CF+8*b+2*q,2)} offset:{2560*b + 16*q}')
a(f'''; read back: lane -> block (l>>2) + 16 jj, part l&3
v_lshrrev_b32 v{vT0}, 2, v{vLANE}
v_mul_u32_u24 v{vT0}, 80, v{vT0}
v_and_b32 v{vT1}, 3, v{vLANE}
v_lshl_add_u32 v{vT0}, v{vT1}, 4, v{vT0}
v_add_u32 v8, s{sU1}, v{vT0}
v_lshrrev_b32 v{vT0}, 3, v{vLANE}
v_mov_b32 v{vT2}, 81920
v_mul_lo_u32 v{vT0}, v{vT0}, v{vT2}
v_and_b32 v{vT1}, 7, v{vLANE}
v_lshl_add_u32 v9, v{vT1}, 4, v{vT0}
s_lshl_b32 s{sT0}, s{sCH}, 7
s_add_u32 s{sT0}, s{sT0}, {WS_YT}''')
for jj in range(4):
    a(f'ds_read_b128 {v(N0+4*jj,4)}, v8 offset:{2560 + 1280*jj}')
for jj in range(4):
    a(f'''s_waitcnt lgkmcnt({3-jj})
    buffer_store_dwordx4 {v(N0+4*jj,4)}, v9, s[{R_WS}:{R_WS+3}], s{sT0} offen sc1
    s_add_u32 s{sT0}, s{sT0}, {8*81920}''')
a('''s_waitcnt vmcnt(0)
s_barrier
s_barrier''')

a('L_yout:')
stamp(8)
srd(R_B, P_OUT, 2048 * 2560)
a(f'''ds_read_b32 v8, v{vMISC} offset:{M_NONCE}
v_and_b32 v10, 31, v{vLANE}
v_lshlrev_b32 v10, 10, v10
s_lshl_b32 s{sT1}, s{sG}, 7
s_add_u32 s{sT1}, s{sT1}, {WS_FY}
s_mul_i32 s{sU0}, s{sSI}, 3072
s_add_u32 s{sU0}, s{sU0}, {L_YS}
s_mul_i32 s{sT0}, s{sRHO}, 81920
s_mul_i32 s{sT2}, s{sG}, 10240
s_add_u32 s{sT0}, s{sT0}, s{sT2}
s_lshl_b32 s{sT2}, s{sSI}, 5
s_add_u32 s{sT0}, s{sT0}, s{sT2}
s_add_u32 s{sU1}, s{sT0}, {WS_YT}''')
for j in range(3):
    a(f'''v_add_u32 v{vT0}, {64*j}, v{vLANE}
    v_min_u32 v{vT0}, 159, v{vT0}
    v_lshrrev_b32 v{vT1}, 1, v{vT0}
    v_lshlrev_b32 v{vT1}, 7, v{vT1}
    v_and_b32 v{vT0}, 1, v{vT0}
    v_lshl_add_u32 v{16+j}, v{vT0}, 4, v{vT1}''')
a(f'''; tr-read address: priv + (8 o + r)*32 + 8 c, o = 4 b + kq (clamped to 9)
v_lshrrev_b32 v{vT0}, 4, v{vLANE}
v_bfe_u32 v{vT1}, v{vLANE}, 2, 2
v_and_b32 v{vT2}, 3, v{vLANE}
v_lshlrev_b32 v{vT2}, 3, v{vT2}
v_lshl_add_u32 v{vT2}, v{vT1}, 5, v{vT2}
v_add_u32 v{vT2}, s{sU0}, v{vT2}
v_lshl_add_u32 v20, v{vT0}, 8, v{vT2}
v_and_b32 v{vT3}, 1, v{vT0}
v_lshl_add_u32 v21, v{vT3}, 8, v{vT2}
v_and_b32 v{vT1}, 15, v{vLANE}
v_mul_u32_u24 v{vT1}, 2560, v{vT1}
v_lshl_add_u32 v22, v{vT0}, 4, v{vT1}
s_lshl_b32 s{sT0}, s{sRHO}, 6
s_lshl_b32 s{sT2}, s{sSI}, 4
s_add_u32 s{sT0}, s{sT0}, s{sT2}
s_mul_i32 s{sT0}, s{sT0}, 2560
s_mul_i32 s{sT2}, s{sG}, 160
s_add_u32 s{sT0}, s{sT0}, s{sT2}
s_add_u32 s{sU2}, s{sT0}, 1280
s_waitcnt lgkmcnt(0)
v_readfirstlane_b32 s{sNON}, v8
s_mov_b32 s{sSPIN}, {SPIN}
L_py:
buffer_load_dword v11, v10, s[{R_WS}:{R_WS+3}], s{sT1} offen sc1
s_waitcnt vmcnt(0)
v_cmp_ne_u32 vcc, s{sNON}, v11
s_cbranch_vccz L_py_go
s_sub_u32 s{sSPIN}, s{sSPIN}, 1
s_cmp_lg_u32 s{sSPIN}, 0
s_cbranch_scc1 L_py
L_py_go:''')
for j in range(3):
    a(f'''s_add_u32 m0, s{sU0}, {1024*j}
    s_nop 0
    buffer_load_dwordx4 v{16+j}, s[{R_WS}:{R_WS+3}], s{sU1} offen sc1 lds''')
a('s_waitcnt vmcnt(0)')
for b in range(3):
    r, o = (20, 1024 * b) if b < 2 else (21, 2048)
    a(f'''ds_read_b64_tr_b16 {v(24+4*b,2)}, v{r} offset:{o}
    ds_read_b64_tr_b16 {v(26+4*b,2)}, v{r} offset:{o+128}''')
a(f'''s_waitcnt lgkmcnt(0)
buffer_store_dwordx4 v[24:27], v22, s[{R_B}:{R_B+3}], s{sU2} offen
buffer_store_dwordx4 v[28:31], v22, s[{R_B}:{R_B+3}], s{sU2} offen offset:64
s_mov_b32 exec_hi, 0
buffer_store_dwordx4 v[32:35], v22, s[{R_B}:{R_B+3}], s{sU2} offen offset:128
s_mov_b64 exec, -1''')
if STAMPS:
    a('s_waitcnt vmcnt(0)')
stamp(9)
a('L_exit:\ns_endpgm')

lines, nins = hazard_pass(a.lines, verbose='-v' in sys.argv)
ref = open('cdna_kernels/%s.s.ref' % NAME).read().split('\n')
head = []
for l in ref:
    if l.startswith('; @launch'):
        break
    head.append(l)
txt = '\n'.join(head) + f'''
; @launch grid=(256,1,1) block=(768,1,1) lds={LDS_BYTES}
.amdgcn_target "amdgcn-amd-amdhsa--gfx950"
.text
.globl {NAME}_kernel
.p2align 8
.type {NAME}_kernel,@function
{NAME}_kernel:
''' + '\n'.join(lines) + f'''
.section .rodata,"a"
.p2align 6
.amdhsa_kernel {NAME}_kernel
  .amdhsa_next_free_vgpr 168
  .amdhsa_next_free_sgpr 100
  .amdhsa_accum_offset 168
  .amdhsa_group_segment_fixed_size 0
  .amdhsa_kernarg_size 120
  .amdhsa_user_sgpr_count 2
  .amdhsa_user_sgpr_kernarg_segment_ptr 1
  .amdhsa_system_sgpr_workgroup_id_x 1
  .amdhsa_float_denorm_mode_32 3
.end_amdhsa_kernel
'''
out = [x for x in sys.argv[1:] if not x.startswith('-')]
path = out[0] if out else 'cdna_kernels/%s.s' % NAME
open(path, 'w').write(txt)
print('wrote', path, len(lines), 'lines; hazard nops inserted:', nins)
```
